```python
import torch

def _softmax(x, axis=-1):
    return torch.softmax(x, dim=axis)
def _gelu(x):
    return torch.nn.functional.gelu(x, approximate="tanh")
def _silu(x):
    return torch.nn.functional.silu(x)
def _sigmoid(x):
    return torch.sigmoid(x)
def _layernorm(x, axis=-1, eps=1e-5):
    m = x.mean(dim=axis, keepdim=True)
    v = x.var(dim=axis, keepdim=True, unbiased=False)
    return (x - m) / torch.sqrt(v + eps)
def _scatter_add(tgt, idx, src, axis=0):
    return tgt.clone().index_add_(axis, idx, src)
def _segment_sum(src, seg, n):
    out = torch.zeros((n,) + src.shape[1:], dtype=src.dtype)
    return out.index_add_(0, seg, src)
def _pad(x, pw):
    flat = tuple(v for pair in reversed(pw) for v in pair)
    return torch.nn.functional.pad(x, flat)

kernel_name = 'sequential_preLN__spectral_gfnet__moe_arch_mod__prompt'

def setup_inputs():

    _w = (lambda a: (lambda t: t.to(torch.bfloat16) if t.is_floating_point() else t)(torch.as_tensor(a)))
    def _A_setup():
        B, S, D = 1, 2048, 576
        Df = D // 2 + 1
        return {
            "x": _w((lambda *s: torch.randn(*s, dtype=torch.bfloat16) * 0.05)(B, S, D)),
            "w_r": _w((lambda *s: torch.randn(*s, dtype=torch.bfloat16) * 0.4)(S, Df) * 0.02),
            "w_i": _w((lambda *s: torch.randn(*s, dtype=torch.bfloat16) * 0.4)(S, Df) * 0.02),
        }
    _A_in = _A_setup()

    def _B_setup():
        B, S, D, F, C = 1, 2048, 576, 4608, 2
        return {
            "x": _w((lambda *s: torch.randn(*s, dtype=torch.bfloat16) * 0.05)(B, S, D)),
            "w_r": _w((lambda *s: torch.randn(*s, dtype=torch.bfloat16) * 0.05)(D)),
            "w_gate": _w((lambda *s: torch.randn(*s, dtype=torch.bfloat16) * 0.05)(D, F)),
            "w_up": _w((lambda *s: torch.randn(*s, dtype=torch.bfloat16) * 0.05)(D, F)),
            "w_down": _w((lambda *s: torch.randn(*s, dtype=torch.bfloat16) * 0.05)(F, D)),
        }
    _B_in = _B_setup()

    return {
        "A_x": _A_in["x"],
        "A_w_r": _A_in["w_r"],
        "A_w_i": _A_in["w_i"],
        "B_x": _B_in["x"],
        "B_w_r": _B_in["w_r"],
        "B_w_gate": _B_in["w_gate"],
        "B_w_up": _B_in["w_up"],
        "B_w_down": _B_in["w_down"],
    }

def reference(A_x, A_w_r, A_w_i, B_x, B_w_r, B_w_gate, B_w_up, B_w_down):
    def _A_ref(x, w_r, w_i):
        B, S, D = x.shape
        X = (lambda x, axes=(-2,-1): torch.fft.rfft2(x.float(), dim=axes))(x, axes=(-2, -1))
        W = w_r + 1j * w_i
        X = X * W
        y = (lambda x, s, axes=(-2,-1): torch.fft.irfft2(x, s=s, dim=axes).to(torch.bfloat16))(X, (S, D), axes=(-2, -1))
        return y

    def _B_ref(x, w_r, w_gate, w_up, w_down):
        B, S, D = x.shape
        C = 2
        r = x @ w_r
        idx = torch.argsort(-r, axis=-1)[:, :C]
        idx_e = (lambda x, n, axis: torch.repeat_interleave(x, n, dim=axis))(idx.reshape(B, C, 1), D, axis=2)
        x_sel = (lambda x, i, axis: torch.take_along_dim(x, i, dim=axis))(x, idx_e, axis=1)
        g = _silu(x_sel @ w_gate)
        u = x_sel @ w_up
        y = (g * u) @ w_down
        r_sel = _sigmoid((lambda x, i, axis: torch.take_along_dim(x, i, dim=axis))(r, idx, axis=1))
        y = y * r_sel.reshape(B, C, 1)
        b_off = (torch.arange(B) * S).reshape(B, 1)
        flat_idx = (idx + b_off).reshape(B * C)
        zero = (x * 0.0).reshape(B * S, D)
        upd = _scatter_add(zero, flat_idx, y.reshape(B * C, D), axis=0)
        return x + upd.reshape(B, S, D)

    x = A_x
    h = x + _A_ref(_layernorm(x, axis=-1), A_w_r, A_w_i)
    h2 = h + _B_ref(_layernorm(h, axis=-1), B_w_r, B_w_gate, B_w_up, B_w_down)
    return h2
```

```python
import struct
def f2u(x): return struct.unpack('<I', struct.pack('<f', x))[0]
def fl(x): return '0x%08x' % f2u(x)
Y1T=0x0; ZT=0x300000; WT=0x600000; WMAX=0x900000; RK=0x901000; SEL=0x903000
HH=0xA00000; HN=0xD00000; PART=0x1000000; WS_SZ=0x1200000
class A:
    def __init__(s): s.l=[]
    def __call__(s, *lines):
        for x in lines:
            for y in x.strip('\n').split('\n'):
                y=y.strip()
                if y.startswith('s_mov_b64 exec, 0x'):
                    v=int(y.split(',')[1],16)
                    s.l.append(f'    s_mov_b32 exec_lo, 0x{v&0xffffffff:x}'); s.l.append(f'    s_mov_b32 exec_hi, 0x{v>>32:x}')
                else: s.l.append('    '+y)
    def lab(s, n): s.l.append(n+':')
    def txt(s): return '\n'.join(s.l)+'\n'
def srd(a, d, lo, size):
    a(f's_mov_b32 s{d}, s{lo}', f's_and_b32 s{d+1}, s{lo+1}, 0xffff', f's_mov_b32 s{d+2}, 0x{size:x}', f's_mov_b32 s{d+3}, 0x00020000')
def vr(b, n): return f'v[{b}:{b+n-1}]'
def mfma(a, d, x, y, c=None, kind='16x16x32_f16', n=4):
    a(f'v_mfma_f32_{kind} {vr(d,4)}, {vr(x,n)}, {vr(y,n)}, '+('0' if c is None else vr(c,4)))
def frag(a, dc, ds, rowf, base, cjs, N, tmp, dn=None, scale=None):
    n=len(cjs)
    for j,c in enumerate(cjs): a(f'v_fmamk_f32 v{tmp+j}, v{rowf}, {fl(c/N)}, v{base}')
    for j in range(n): a(f'v_cos_f32 v{tmp+8+j}, v{tmp+j}')
    for j in range(n): a(f'v_sin_f32 v{tmp+16+j}, v{tmp+j}')
    for j in range(0,n,2): a(f'v_cvt_pk_f16_f32 v{dc+j//2}, v{tmp+8+j}, v{tmp+9+j}')
    for j in range(0,n,2): a(f'v_cvt_pk_f16_f32 v{ds+j//2}, v{tmp+16+j}, v{tmp+17+j}')
    if dn is not None:
        for j in range(n//2): a(f'v_xor_b32 v{dn+j}, 0x80008000, v{ds+j}')
PAT=[16*(j>>2)+(j&3) for j in range(8)]
def red32(a, v, t, op='v_add_f32'):
    for m in ['quad_perm:[1,0,3,2]','quad_perm:[2,3,0,1]','row_half_mirror','row_mirror']:
        a('s_nop 1', f'{op}_dpp v{v}, v{v}, v{v} {m} row_mask:0xf bank_mask:0xf')
    a(f'v_mov_b32 v{t}, v{v}', 's_nop 1', f'v_permlane16_swap_b32 v{v}, v{t}', f'{op} v{v}, v{v}, v{t}')
def red64(a, v, t, op):
    red32(a, v, t, op)
    a(f'v_mov_b32 v{t}, v{v}', 's_nop 1', f'v_permlane32_swap_b32 v{v}, v{t}', f'{op} v{v}, v{v}, v{t}')
def unpack(a, d, s, n):
    for i in range(n):
        a(f'v_lshlrev_b32 v{d+2*i}, 16, v{s+i}', f'v_and_b32 v{d+2*i+1}, 0xffff0000, v{s+i}')
def rbf(a, v, t):
    a(f'v_cvt_pk_bf16_f32 v{t}, v{v}, v{v}', f'v_lshlrev_b32 v{v}, 16, v{t}')
def layernorm(a, x, o, t):
    a(f'v_add_f32 v{t}, v{x}, v{x+1}')
    for i in range(2,18): a(f'v_add_f32 v{t}, v{t}, v{x+i}')
    red32(a, t, t+1)
    a(f'v_mul_f32 v{t}, {fl(1/576)}, v{t}')
    a(f'v_sub_f32 v{t+3}, v{x}, v{t}', f'v_mul_f32 v{t+2}, v{t+3}, v{t+3}')
    for i in range(1,18): a(f'v_sub_f32 v{t+3+(i&1)}, v{x+i}, v{t}', f'v_fmac_f32 v{t+2}, v{t+3+(i&1)}, v{t+3+(i&1)}')
    red32(a, t+2, t+1)
    a(f'v_mul_f32 v{t+2}, {fl(1/576)}, v{t+2}')
    rbf(a, t, t+1); rbf(a, t+2, t+1)
    a(f'v_add_f32 v{t+2}, {fl(1e-5)}, v{t+2}'); rbf(a, t+2, t+1)
    a(f'v_sqrt_f32 v{t+2}, v{t+2}', 's_nop 0'); rbf(a, t+2, t+1)
    a(f'v_rcp_f32 v{t+3}, v{t+2}')
    for i in range(9):
        a(f'v_sub_f32 v{x+2*i}, v{x+2*i}, v{t}', f'v_sub_f32 v{x+2*i+1}, v{x+2*i+1}, v{t}', f'v_cvt_pk_bf16_f32 v{o+i}, v{x+2*i}, v{x+2*i+1}')
    unpack(a, x, o, 9)
    for i in range(18):
        q=t+4+(i&1)*2
        a(f'v_mul_f32 v{q}, v{x+i}, v{t+3}', f'v_fma_f32 v{q+1}, -v{q}, v{t+2}, v{x+i}', f'v_fma_f32 v{x+i}, v{q+1}, v{t+3}, v{q}')
    for i in range(9): a(f'v_cvt_pk_bf16_f32 v{o+i}, v{x+2*i}, v{x+2*i+1}')
    unpack(a, x, o, 9)
def wscale(a, v, t, sws, inv):
    a(f'v_max3_u32 v{v}, v{v}, v{v+1}, v{v+2}', f'v_max_u32 v{v}, v{v}, v{v+3}')
    red64(a, v, t, 'v_max_u32')
    a(f'v_lshrrev_b32 v{v}, 7, v{v}', f'v_max_u32 v{v}, 1, v{v}', f'v_min_u32 v{v}, 0xfd, v{v}')
    if not inv: a(f'v_sub_u32 v{v}, 0xfe, v{v}')
    a(f'v_lshlrev_b32 v{v}, 23, v{v}')
def kdesc(name, vg, sg=48):
    vg=(vg+3)//4*4
    return f'''.section .rodata,"a"
.p2align 6
.amdhsa_kernel {name}
  .amdhsa_next_free_vgpr {vg}
  .amdhsa_next_free_sgpr {sg}
  .amdhsa_accum_offset {vg}
  .amdhsa_group_segment_fixed_size 0
  .amdhsa_kernarg_size 88
  .amdhsa_user_sgpr_count 2
  .amdhsa_user_sgpr_kernarg_segment_ptr 1
  .amdhsa_system_sgpr_workgroup_id_x 1
.end_amdhsa_kernel
'''
def khead(name):
    return f'.text\n.globl {name}\n.p2align 8\n.type {name},@function\n{name}:\n'

def rowio(a, op, r, va, vb, srd_, so):
    a(f'buffer_{op}_dwordx4 {vr(r,4)}, v{va}, {srd_}, {so} offen', f'buffer_{op}_dwordx4 {vr(r+4,4)}, v{va}, {srd_}, {so} offen offset:512',
      f'buffer_{op}_dword v{r+8}, v{vb}, {srd_}, {so} offen offset:1024')
```

```python
from common import *
def k1():
    a=A()
    a('''s_load_dwordx2 s[4:5], s[0:1], 0
    s_load_dwordx4 s[8:11], s[0:1], 8
    s_load_dwordx2 s[6:7], s[0:1], 80
    v_and_b32 v1, 63, v0
    v_lshrrev_b32 v3, 6, v0
    s_cmp_ge_u32 s2, 512
    s_cbranch_scc1 K1_END
    v_readfirstlane_b32 s3, v3
    s_waitcnt lgkmcnt(0)''')
    srd(a,16,6,WS_SZ)
    a('s_cmp_ge_u32 s2, 256','s_cbranch_scc1 K1_W')
    srd(a,12,4,2048*1152)
    a('''s_lshr_b32 s28, s2, 3
    s_and_b32 s29, s2, 1
    s_bfe_u32 s30, s2, 0x20001
    s_lshl_b32 s31, s29, 5
    s_lshr_b32 s32, s3, 1
    s_lshl_b32 s33, s32, 4
    s_add_u32 s31, s31, s33
    s_lshl_b32 s33, s30, 2
    s_add_u32 s31, s31, s33
    s_and_b32 s33, s3, 1
    s_lshl_b32 s34, s33, 1
    s_add_u32 s31, s31, s34
    s_lshl_b32 s31, s31, 5
    s_add_u32 s31, s31, s28
    s_mul_i32 s31, s31, 1152
    v_lshrrev_b32 v3, 5, v1
    v_mul_u32_u24 v2, 36864, v3
    v_and_b32 v3, 31, v1
    v_lshl_add_u32 v13, v3, 2, v2
    v_lshl_add_u32 v2, v3, 4, v2
    buffer_load_dwordx4 v[4:7], v2, s[12:15], s31 offen
    buffer_load_dwordx4 v[8:11], v2, s[12:15], s31 offen offset:512
    buffer_load_dword v12, v13, s[12:15], s31 offen offset:1024
    v_lshrrev_b32 v13, 4, v1
    v_and_b32 v14, 15, v1
    v_cvt_f32_u32 v15, v14
    v_cvt_f32_u32 v16, v13
    v_mul_f32 v17, v15, v16''')
    a(f'v_mul_f32 v18, {fl(8/18)}, v17')
    frag(a,20,28,15,18,list(range(8)),18,56,dn=24)
    a('s_mov_b64 exec, 0xffffffff00000000')
    for r in (21,22,23,25,26,27): a(f'v_mov_b32 v{r}, 0')
    a('s_mov_b64 exec, 0xffff000000000000','v_mov_b32 v20, 0','v_mov_b32 v24, 0','s_mov_b64 exec, -1')
    a(f'v_mul_f32 v18, {fl(4/576)}, v17')
    for j in range(8): a(f'v_fmamk_f32 v{56+j}, v15, {fl(PAT[j]/576)}, v18')
    for j in range(8): a(f'v_cos_f32 v{32+j}, v{56+j}')
    for j in range(8): a(f'v_sin_f32 v{40+j}, v{56+j}')
    a('s_lshl_b32 s34, s33, 4','v_add_u32 v18, s34, v14','v_cvt_f32_u32 v18, v18','v_mul_f32 v19, v18, v16',f'v_mul_f32 v19, {fl(8/32)}, v19')
    for j in range(16): a(f'v_mul_f32 v{32+j}, {fl(1/24)}, v{32+j}')
    frag(a,48,52,18,19,list(range(8)),32,56)
    a('s_mul_i32 s35, s32, 0x80008000')
    for j in range(4): a(f'v_xor_b32 v{52+j}, s35, v{52+j}')
    a('''v_lshrrev_b32 v3, 5, v1
    v_mul_u32_u24 v18, 1152, v3
    v_and_b32 v3, 31, v1
    s_mul_i32 s36, s3, 2304
    v_add_u32 v18, s36, v18
    v_lshl_add_u32 v118, v3, 2, v18
    v_lshl_add_u32 v18, v3, 4, v18
    v_bfe_u32 v3, v1, 2, 2
    v_lshl_add_u32 v3, v13, 3, v3
    v_min_u32 v19, 17, v3
    v_add_u32 v3, 4, v3
    v_min_u32 v3, 17, v3
    v_and_b32 v116, 3, v1
    v_lshlrev_b32 v116, 3, v116
    v_add_u32 v116, s36, v116
    v_lshl_add_u32 v117, v3, 6, v116
    v_lshl_add_u32 v116, v19, 6, v116
    s_waitcnt vmcnt(0)''')
    unpack(a,80,4,9)
    layernorm(a,80,100,56)
    for i in range(9): a(f'v_cvt_pkrtz_f16_f32 v{100+i}, v{80+2*i}, v{81+2*i}')
    a('ds_write_b128 v18, v[100:103]','ds_write_b128 v18, v[104:107] offset:512','ds_write_b32 v118, v108 offset:1024')
    for h,(A0,D0) in enumerate(((56,64),(80,88))):
        for t in range(2):
            a(f'ds_read_b64_tr_b16 {vr(A0+4*t,2)}, v116 offset:{h*1152+t*32}', f'ds_read_b64_tr_b16 {vr(A0+4*t+2,2)}, v117 offset:{h*1152+t*32}')
    a('''v_mul_u32_u24 v18, 528, v14
    v_lshl_add_u32 v18, v13, 3, v18
    s_lshl_b32 s36, s3, 7
    s_add_u32 s36, s36, 9216
    v_add_u32 v18, s36, v18
    v_lshrrev_b32 v3, 2, v14
    v_mul_u32_u24 v19, 528, v3
    v_and_b32 v3, 3, v14
    v_lshl_add_u32 v19, v3, 6, v19
    v_lshl_add_u32 v19, v13, 4, v19
    s_mul_i32 s36, s32, 8448
    s_add_u32 s37, s36, 9216
    s_sub_u32 s36, 17664, s36
    v_lshl_add_u32 v2, v13, 5, v14
    v_add_u32 v2, s34, v2
    v_lshlrev_b32 v2, 13, v2''')
    for h,(A0,D0) in enumerate(((56,64),(80,88))):
        a(f's_waitcnt lgkmcnt({4 if h==0 else 0})')
        for t in range(2):
            mfma(a,D0+4*t,A0+4*t,20); mfma(a,D0+8+4*t,A0+4*t,24)
    a('v_add_u32 v16, s37, v19','v_add_u32 v17, s36, v19','s_nop 4')
    for h,(A0,D0) in enumerate(((56,64),(80,88))):
        O=104+8*h
        for t in range(2):
            for r in range(4):
                j=4*t+r; re=D0+j; im=D0+8+j
                a(f'v_mul_f32 v{120+r}, v{re}, v{32+j}', f'v_mul_f32 v{124+r}, v{im}, v{32+j}',
                  f'v_fmac_f32 v{120+r}, v{im}, v{40+j}', f'v_fma_f32 v{124+r}, -v{re}, v{40+j}, v{124+r}')
            a(f'v_cvt_pk_f16_f32 v{O+4*t}, v120, v121', f'v_cvt_pk_f16_f32 v{O+4*t+1}, v122, v123',
              f'v_cvt_pk_f16_f32 v{O+4*t+2}, v124, v125', f'v_cvt_pk_f16_f32 v{O+4*t+3}, v126, v127')
            a(f'ds_write_b64 v18, {vr(O+4*t,2)} offset:{h*64+t*32}', f'ds_write_b64 v18, {vr(O+4*t+2,2)} offset:{8448+h*64+t*32}')
    a('''s_lshl_b32 s38, s32, 12
    s_lshl_b32 s39, s29, 11
    s_add_u32 s38, s38, s39
    s_lshr_b32 s39, s28, 4
    s_lshl_b32 s39, s39, 10
    s_add_u32 s38, s38, s39
    s_lshl_b32 s39, s30, 8
    s_add_u32 s38, s38, s39
    s_and_b32 s39, s28, 15
    s_lshl_b32 s39, s39, 4
    s_add_u32 s38, s38, s39
    s_add_u32 s39, s38, 0x100000
    s_add_u32 s40, s38, 0x200000
    s_waitcnt lgkmcnt(0)
    s_barrier''')
    for P in range(3):
        for rho in range(2):
            q=2*P+rho
            a(f'ds_read_b128 {vr(56+8*q,4)}, v16 offset:{P*2112+rho*256}', f'ds_read_b128 {vr(60+8*q,4)}, v17 offset:{P*2112+rho*256}')
    for q in range(6):
        a(f's_waitcnt lgkmcnt({10-2*q})')
        mfma(a,104+4*q,56+8*q,48); mfma(a,104+4*q,60+8*q,52,104+4*q)
    a('s_nop 7')
    for P in range(3):
        for k in range(4): a(f'v_cvt_pk_f16_f32 v{56+4*P+k}, v{104+8*P+2*k}, v{105+8*P+2*k}')
        if P==2: a('s_mov_b64 exec, 0xffffffff')
        a(f'buffer_store_dwordx4 {vr(56+4*P,4)}, v2, s[16:19], s{38+P} offen')
    a('s_endpgm')
    a.lab('K1_W')
    srd(a,20,8,2048*578); srd(a,24,10,2048*578)
    a('''s_sub_u32 s28, s2, 256
    s_and_b32 s29, s28, 7
    s_lshl_b32 s29, s29, 5
    s_lshr_b32 s28, s28, 3
    s_add_u32 s28, s28, s29
    s_mul_i32 s29, s28, 4624
    v_lshlrev_b32 v2, 4, v0
    v_add_u32 v3, 0x1000, v2
    v_mov_b32 v20, 0x7fffffff
    v_cmp_gt_u32 vcc, 33, v0
    s_nop 1
    v_cndmask_b32 v20, v20, v3, vcc
    buffer_load_dwordx4 v[4:7], v2, s[20:23], s29 offen
    buffer_load_dwordx4 v[8:11], v2, s[24:27], s29 offen
    buffer_load_dwordx4 v[12:15], v20, s[20:23], s29 offen
    buffer_load_dwordx4 v[16:19], v20, s[24:27], s29 offen
    v_min_u32 v3, 0x1210, v3
    s_waitcnt vmcnt(0)
    ds_write_b128 v2, v[4:7]
    ds_write_b128 v2, v[8:11] offset:4640
    ds_write_b128 v3, v[12:15]
    ds_write_b128 v3, v[16:19] offset:4640''')
    for i in range(16): a(f'v_and_b32 v{24+i}, 0x7fff7fff, v{4+i}')
    for i in range(1,16): a(f'v_pk_max_u16 v24, v24, v{24+i}')
    a('v_lshrrev_b32 v25, 16, v24','v_and_b32 v24, 0xffff, v24','v_max_u32 v24, v24, v25')
    red64(a,24,25,'v_max_u32')
    a('''s_lshl_b32 s30, s3, 2
    s_add_u32 s30, s30, 9296
    v_mov_b32 v25, s30
    ds_write_b32 v25, v24
    v_and_b32 v21, 1, v0
    v_mul_u32_u24 v22, 2312, v21
    v_and_b32 v23, 0xfe, v0
    v_add_u32 v22, v22, v23
    v_lshlrev_b32 v23, 12, v23
    v_lshl_add_u32 v23, v21, 4, v23
    s_lshl_b32 s31, s28, 5''')
    a(f's_add_u32 s31, s31, 0x{WT:x}', 's_add_u32 s32, s31, 0x100000', 's_add_u32 s33, s31, 0x200000', 's_waitcnt lgkmcnt(0)','s_barrier')
    for rd in range(3):
        for rr in range(4):
            a(f'ds_read_u16 v{4+4*rd+rr}, v22 offset:{rr*578+rd*256}', f'ds_read_u16 v{28+4*rd+rr}, v22 offset:{4640+rr*578+rd*256}')
    a('v_mov_b32 v25, 9296','ds_read_b128 v[24:27], v25','s_waitcnt lgkmcnt(0)')
    for q in range(12): a(f'v_lshl_or_b32 v{4+q}, v{28+q}, 16, v{4+q}')
    a('buffer_store_dwordx4 v[4:7], v23, s[16:19], s31 offen','buffer_store_dwordx4 v[8:11], v23, s[16:19], s32 offen',
      'v_cmp_gt_u32 vcc, 66, v0','s_and_saveexec_b64 s[34:35], vcc','s_cbranch_execz K1_END',
      'buffer_store_dwordx4 v[12:15], v23, s[16:19], s33 offen','s_waitcnt lgkmcnt(0)',
      'v_max3_u32 v24, v24, v25, v26','v_max_u32 v24, v24, v27','s_lshl_b32 s28, s28, 2',f's_add_u32 s28, s28, 0x{WMAX:x}',
      'v_cmp_eq_u32 vcc, 0, v0','s_and_saveexec_b64 s[34:35], vcc','s_cbranch_execz K1_END','v_mov_b32 v2, 0','buffer_store_dword v24, v2, s[16:19], s28 offen')
    a.lab('K1_END'); a('s_endpgm')
    return a.txt(), 128, 26112
```

```python
from common import *
def cmul_pack(a, re, im, c, s, O, sign, T):
    for r in range(4):
        a(f'v_mul_f32 v{T+r}, v{re+r}, v{c+r}', f'v_mul_f32 v{T+4+r}, v{im+r}, v{c+r}')
        if sign<0: a(f'v_fmac_f32 v{T+r}, v{im+r}, v{s+r}', f'v_fma_f32 v{T+4+r}, -v{re+r}, v{s+r}, v{T+4+r}')
        else: a(f'v_fma_f32 v{T+r}, -v{im+r}, v{s+r}, v{T+r}', f'v_fmac_f32 v{T+4+r}, v{re+r}, v{s+r}')
    ore,oim=O
    a(f'v_cvt_pk_f16_f32 v{ore}, v{T}, v{T+1}', f'v_cvt_pk_f16_f32 v{ore+1}, v{T+2}, v{T+3}',
      f'v_cvt_pk_f16_f32 v{oim}, v{T+4}, v{T+5}', f'v_cvt_pk_f16_f32 v{oim+1}, v{T+6}, v{T+7}')
def k2():
    a=A()
    a('''s_load_dwordx2 s[6:7], s[0:1], 80
    v_and_b32 v1, 63, v0
    v_lshrrev_b32 v3, 6, v0
    s_cmp_ge_u32 s2, 289
    s_cbranch_scc1 K2_END
    v_readfirstlane_b32 s3, v3
    s_lshr_b32 s28, s2, 5
    s_add_u32 s28, s28, 1
    s_and_b32 s29, s2, 31
    s_cmp_lt_u32 s2, 256
    s_cbranch_scc1 K2_A
    s_mov_b32 s28, 0
    s_sub_u32 s29, s2, 256
    s_cmp_lt_u32 s2, 273
    s_cbranch_scc1 K2_A
    s_mov_b32 s28, 9
    s_sub_u32 s29, s2, 273''')
    a.lab('K2_A')
    a('''s_lshl_b32 s30, s28, 5
    s_add_u32 s30, s30, s29
    s_lshl_b32 s30, s30, 13
    s_mul_i32 s31, s29, 18
    s_add_u32 s31, s31, s28
    s_sub_u32 s32, 576, s31
    s_cmp_gt_u32 s31, 288
    s_cselect_b32 s32, s32, s31
    s_cselect_b32 s33, -1, 0
    s_cselect_b32 s34, 0x80000000, 0
    s_lshl_b32 s32, s32, 13''')
    a(f's_add_u32 s32, s32, 0x{WT:x}', 's_mov_b32 s35, 2.0', 's_cmp_eq_u32 s31, 0', 's_cselect_b32 s35, 1.0, s35', 's_cmp_eq_u32 s31, 288', 's_cselect_b32 s35, 1.0, s35')
    a('v_lshlrev_b32 v2, 4, v1','s_waitcnt lgkmcnt(0)')
    srd(a,16,6,WS_SZ)
    a('s_add_u32 s36, s30, 4096')
    for p in range(2):
        for q in range(4): a(f'buffer_load_dwordx4 {vr(64+16*p+4*q,4)}, v2, s[16:19], s{30 if p==0 else 36} offen offset:{q*1024}')
    a(f's_mov_b32 s37, 0x{WMAX:x}', 'buffer_load_dwordx4 v[56:59], v2, s[16:19], s37 offen')
    a('''v_lshrrev_b32 v13, 4, v1
    v_and_b32 v14, 15, v1
    s_lshl_b32 s38, s3, 4
    v_add_u32 v15, s38, v14
    v_lshl_add_u32 v3, v13, 8, v15''')
    for t in range(2):
        for r in range(4):
            j=4*t+r
            a(f'v_add_u32 v4, {64*(16*t+r)}, v3', 'v_xor_b32 v4, s33, v4', 'v_subrev_u32 v4, s33, v4', 'v_and_b32 v4, 0x7ff, v4', 'v_lshlrev_b32 v4, 2, v4',
              f'buffer_load_dword v{48+j}, v4, s[16:19], s32 offen')
    a('''v_cvt_f32_u32 v15, v15
    v_cvt_f32_u32 v16, v13
    v_cvt_f32_u32 v17, v14
    v_mul_f32 v18, v15, v16''')
    a(f'v_mul_f32 v19, {fl(4/64)}, v18')
    for u in range(2): frag(a,96+12*u,100+12*u,15,19,[32*u+c for c in PAT],64,20,dn=104+12*u)
    for t in range(2):
        a(f'v_add_f32 v4, {fl(16.0*t)}, v17', 'v_mul_f32 v5, v4, v16', f'v_mul_f32 v5, {fl(4/32)}, v5')
        frag(a,120+12*t,124+12*t,4,5,PAT,32,20,dn=128+12*t)
    sc=2048**-0.5
    a(f'v_mul_f32 v19, {fl(4/2048)}, v18')
    for j in range(8): a(f'v_fmamk_f32 v{20+j}, v15, {fl(PAT[j]/2048)}, v19')
    a('v_lshlrev_b32 v4, 2, v13','v_add_u32 v4, s38, v4','v_cvt_f32_u32 v4, v4',f'v_mul_f32 v4, {fl(1/2048)}, v4')
    for t in range(2):
        a(f'v_add_f32 v5, {fl(16.0*t)}, v17', 'v_mul_f32 v6, v5, v4')
        for r in range(4): a(f'v_fmamk_f32 v{28+4*t+r}, v5, {fl(r/2048)}, v6')
    for j in range(8): a(f'v_cos_f32 v{144+j}, v{20+j}', f'v_sin_f32 v{152+j}, v{20+j}', f'v_cos_f32 v{160+j}, v{28+j}', f'v_sin_f32 v{168+j}, v{28+j}')
    a('s_nop 0')
    for j in range(32): a(f'v_mul_f32 v{144+j}, {fl(sc)}, v{144+j}')
    X=lambda p,u,t: 64+16*p+8*u+4*t
    a('s_waitcnt vmcnt(9)')
    for t in range(2):
        mfma(a,20+4*t,X(0,0,t),96); mfma(a,28+4*t,X(1,0,t),96)
        mfma(a,20+4*t,X(1,0,t),100,20+4*t); mfma(a,28+4*t,X(0,0,t),104,28+4*t)
        mfma(a,20+4*t,X(0,1,t),108,20+4*t); mfma(a,28+4*t,X(1,1,t),108,28+4*t)
        mfma(a,20+4*t,X(1,1,t),112,20+4*t); mfma(a,28+4*t,X(0,1,t),116,28+4*t)
    a('s_waitcnt vmcnt(8)')
    wscale(a,56,57,None,False)
    a('v_mul_f32 v56, s35, v56')
    for t in range(2): cmul_pack(a,20+4*t,28+4*t,144+4*t,152+4*t,(36+2*t,40+2*t),-1,4)
    a('s_nop 1')
    for t in range(2):
        c=120+12*t
        mfma(a,64+4*t,c,36); mfma(a,72+4*t,c,40); mfma(a,64+4*t,c+4,40,64+4*t); mfma(a,72+4*t,c+8,36,72+4*t)
    a('s_waitcnt vmcnt(0)')
    for j in range(8):
        a(f'v_lshlrev_b32 v{80+j}, 16, v{48+j}', f'v_and_b32 v{88+j}, 0xffff0000, v{48+j}', f'v_xor_b32 v{88+j}, s34, v{88+j}',
          f'v_mul_f32 v{80+j}, v56, v{80+j}', f'v_mul_f32 v{88+j}, v56, v{88+j}')
    for t in range(2): cmul_pack(a,64+4*t,72+4*t,80+4*t,88+4*t,(36+2*t,40+2*t),+1,4)
    a('s_nop 1')
    for t in range(2):
        c=120+12*t
        mfma(a,20+4*t,36,c); mfma(a,28+4*t,40,c); mfma(a,20+4*t,40,c+8,20+4*t); mfma(a,28+4*t,36,c+4,28+4*t)
    a('s_lshl_b32 s39, s3, 11','v_lshlrev_b32 v3, 3, v1','v_add_u32 v4, s39, v3','s_nop 4')
    for t in range(2): cmul_pack(a,20+4*t,28+4*t,160+4*t,168+4*t,(36+4*t,38+4*t),+1,8)
    for q in range(4): a(f'ds_write_b64 v4, {vr(36+2*q,2)} offset:{q*512}')
    a('s_waitcnt lgkmcnt(0)','s_barrier')
    for u in range(2):
        for q in range(4):
            o=(2*u*2048+q*512)
            a(f'ds_read_b64 {vr(64+16*u+4*q,2)}, v3 offset:{o}', f'ds_read_b64 {vr(66+16*u+4*q,2)}, v3 offset:{o+2048}')
    B=lambda u,t,p: 64+16*u+8*t+4*p
    a(f's_add_u32 s40, s30, 0x{ZT:x}', 's_lshl_b32 s39, s3, 10', 's_add_u32 s40, s40, s39', 's_add_u32 s41, s40, 4096')
    for u in range(2):
        a(f's_waitcnt lgkmcnt({8 if u==0 else 0})')
        c=96+12*u
        for t in range(2):
            mfma(a,20+4*t,c,B(u,t,0),None if u==0 else 20+4*t); mfma(a,28+4*t,c,B(u,t,1),None if u==0 else 28+4*t)
            mfma(a,20+4*t,c+8,B(u,t,1),20+4*t); mfma(a,28+4*t,c+4,B(u,t,0),28+4*t)
    a('s_nop 7')
    for k in range(8): a(f'v_cvt_pk_f16_f32 v{36+k}, v{20+2*k}, v{21+2*k}')
    a('buffer_store_dwordx4 v[36:39], v2, s[16:19], s40 offen','buffer_store_dwordx4 v[40:43], v2, s[16:19], s41 offen')
    a.lab('K2_END'); a('s_endpgm')
    return a.txt(), 176, 8192
```

```python
from common import *
def k3():
    a=A()
    PK=176; PL=32*PK
    YL=2*PL; YP=1168
    a('''s_load_dwordx2 s[4:5], s[0:1], 0
    s_load_dwordx2 s[8:9], s[0:1], 32
    s_load_dwordx2 s[10:11], s[0:1], 64
    s_load_dwordx2 s[6:7], s[0:1], 80
    v_and_b32 v1, 63, v0
    v_lshrrev_b32 v3, 6, v0
    s_cmp_ge_u32 s2, 256
    s_cbranch_scc1 K3_END
    v_readfirstlane_b32 s3, v3
    s_lshr_b32 s28, s2, 5
    s_and_b32 s29, s2, 1
    s_lshl_b32 s29, s29, 3
    s_add_u32 s28, s28, s29
    s_bfe_u32 s29, s2, 0x40001
    s_lshl_b32 s30, s29, 8
    s_lshl_b32 s31, s28, 4
    s_add_u32 s30, s30, s31''')
    a(f's_add_u32 s30, s30, 0x{ZT:x}', 's_add_u32 s31, s30, 4096')
    a('''v_mov_b32 v10, 0x7fffffff
    v_lshlrev_b32 v2, 13, v0
    v_subrev_u32 v4, 17, v0
    v_cmp_gt_u32 vcc, 15, v4
    v_and_b32 v5, 63, v0
    v_add_u32 v6, 0x100, v5
    v_cndmask_b32 v2, v2, v10, vcc
    v_lshlrev_b32 v3, 13, v6
    v_bfe_u32 v7, v0, 6, 1
    v_lshl_add_u32 v3, v7, 12, v3
    v_cmp_lt_u32 vcc, 0x7f, v0
    v_cmp_lt_u32 s[32:33], 47, v5
    s_or_b64 vcc, vcc, s[32:33]
    s_waitcnt lgkmcnt(0)''')
    srd(a,16,6,WS_SZ); srd(a,12,4,2048*1152); srd(a,20,8,1152); srd(a,24,10,2048*1152)
    a('''v_cndmask_b32 v3, v3, v10, vcc
    buffer_load_dwordx4 v[64:67], v2, s[16:19], s30 offen
    buffer_load_dwordx4 v[68:71], v2, s[16:19], s31 offen
    buffer_load_dwordx4 v[72:75], v3, s[16:19], s30 offen
    v_lshlrev_b32 v2, 4, v1''')
    a(f's_mov_b32 s37, 0x{WMAX:x}', 'buffer_load_dwordx4 v[56:59], v2, s[16:19], s37 offen')
    a('''s_lshr_b32 s32, s3, 1
    s_and_b32 s33, s3, 1
    s_lshl_b32 s34, s29, 2
    s_lshl_b32 s35, s33, 1
    s_add_u32 s34, s34, s35
    s_lshl_b32 s34, s34, 5
    s_lshl_b32 s35, s32, 4
    s_add_u32 s34, s34, s35
    s_add_u32 s34, s34, s28
    s_mul_i32 s35, s34, 1152
    v_lshrrev_b32 v8, 5, v1
    v_and_b32 v9, 31, v1
    v_lshlrev_b32 v11, 4, v9
    v_lshlrev_b32 v9, 2, v9
    v_mul_u32_u24 v12, 36864, v8
    v_add_u32 v99, v12, v9
    v_add_u32 v12, v12, v11''')
    rowio(a,'load',100,12,99,'s[12:15]','s35'); rowio(a,'load',110,11,9,'s[20:23]','0')
    a(f'''v_and_b32 v4, 31, v0
    v_mul_u32_u24 v4, {PK}, v4
    v_lshrrev_b32 v5, 5, v0
    v_lshl_add_u32 v4, v5, 4, v4
    v_and_b32 v5, 31, v6
    v_mul_u32_u24 v5, {PK}, v5
    v_lshrrev_b32 v6, 5, v6
    v_lshl_add_u32 v5, v6, 4, v5
    v_mul_u32_u24 v7, {PL}, v7
    v_add_u32 v5, v5, v7
    v_lshrrev_b32 v13, 4, v1
    v_and_b32 v14, 15, v1
    s_lshl_b32 s36, s33, 4
    v_add_u32 v15, s36, v14
    v_cvt_f32_u32 v15, v15
    v_cvt_f32_u32 v16, v13
    v_cvt_f32_u32 v17, v14
    v_mul_f32 v18, v15, v16''')
    a(f'v_mul_f32 v19, {fl(8/32)}, v18')
    frag(a,120,124,15,19,list(range(8)),32,20,dn=128)
    a(f'v_mul_f32 v19, {fl(1/576)}, v18')
    for T in range(3): a(f'v_fmamk_f32 v{20+T}, v15, {fl(4*T/576)}, v19')
    for T in range(3): a(f'v_cos_f32 v{132+T}, v{20+T}', f'v_sin_f32 v{135+T}, v{20+T}')
    for mt in range(2):
        a(f'v_add_f32 v24, {fl(16.0*mt)}, v17', 'v_mul_f32 v25, v24, v16', f'v_mul_f32 v25, {fl(1/18)}, v25')
        for T in range(3): a(f'v_fmamk_f32 v{26+T}, v24, {fl(4*T/18)}, v25')
        for T in range(3): a(f'v_cos_f32 v{30+T}, v{26+T}', f'v_sin_f32 v{33+T}, v{26+T}')
        a('s_nop 0')
        for T in range(3): a(f'v_cvt_pk_f16_f32 v{140+4*mt+T}, v{30+T}, -v{33+T}')
        a(f'v_mov_b32 v{143+4*mt}, 0')
    a('s_mov_b64 exec, 0xffffffff00000000','v_mov_b32 v142, 0','v_mov_b32 v146, 0','s_mov_b64 exec, -1')
    for j in range(6): a(f'v_mul_f32 v{132+j}, {fl(1/24)}, v{132+j}')
    a(f'''v_bfe_u32 v6, v1, 2, 2
    v_lshl_add_u32 v6, v13, 3, v6
    v_mul_u32_u24 v6, {PK}, v6
    s_lshl_b32 s36, s32, 3
    v_add_u32 v6, s36, v6
    v_and_b32 v7, 3, v1
    v_min_u32 v19, 1, v7
    v_lshl_add_u32 v19, v19, 4, v6
    v_lshl_add_u32 v6, v7, 4, v6
    s_waitcnt vmcnt(7)
    ds_write_b128 v4, v[64:67]
    ds_write_b128 v4, v[68:71] offset:{PL}
    v_cmp_gt_u32 vcc, 0x80, v0
    s_and_saveexec_b64 s[38:39], vcc
    ds_write_b128 v5, v[72:75]
    s_mov_b64 exec, -1
    s_waitcnt vmcnt(6)''')
    wscale(a,56,57,None,True)
    a('s_waitcnt lgkmcnt(0)','s_barrier')
    for T in range(3):
        for p in range(2):
            for jj in range(2):
                ad='v6' if T<2 else 'v19'
                a(f'ds_read_b64_tr_b16 {vr(64+8*T+4*p+2*jj,2)}, {ad} offset:{p*PL+jj*4*PK+T*64}')
    for T in range(3):
        a(f's_waitcnt lgkmcnt({8-4*T})')
        zr=64+8*T; zi=zr+4; D=20+8*T
        mfma(a,D,zr,120); mfma(a,D+4,zi,120); mfma(a,D,zi,128,D); mfma(a,D+4,zr,124,D+4)
    a(f's_mul_i32 s36, s32, {4*YP}', 's_lshl_b32 s38, s33, 5', 's_add_u32 s36, s36, s38', f's_add_u32 s36, s36, {YL}',
      'v_lshlrev_b32 v4, 6, v14', 'v_lshl_add_u32 v4, v13, 3, v4', 'v_add_u32 v4, s36, v4', 's_nop 1')
    for r in range(4): a(f'v_mov_b32 v{67+4*r}, 0')
    for T in range(3):
        for r in range(4):
            re=20+8*T+r; im=re+4; c=132+T; s=135+T
            a(f'v_mul_f32 v44, v{re}, v{c}', f'v_mul_f32 v45, v{im}, v{c}', f'v_fma_f32 v44, -v{im}, v{s}, v44', f'v_fmac_f32 v45, v{re}, v{s}',
              f'v_cvt_pk_f16_f32 v{64+4*r+T}, v44, v45')
    a('s_nop 1')
    for r in range(4):
        for mt in range(2): mfma(a,20+8*r+4*mt,64+4*r,140+4*mt)
    a('s_nop 4')
    for r in range(4):
        for mt in range(2):
            D=20+8*r+4*mt
            for k in range(4): a(f'v_mul_f32 v{D+k}, v56, v{D+k}')
            a(f'v_cvt_pk_bf16_f32 v{D}, v{D}, v{D+1}', f'v_cvt_pk_bf16_f32 v{D+1}, v{D+2}, v{D+3}')
        a(f'ds_write_b64 v4, {vr(20+8*r,2)} offset:{r*YP}')
    a('s_mov_b64 exec, 0x0003000300030003')
    for r in range(4): a(f'ds_write_b64 v4, {vr(24+8*r,2)} offset:{r*YP+1024}')
    a('s_mov_b64 exec, -1')
    a(f's_mul_i32 s36, s3, {2*YP}', f's_add_u32 s36, s36, {YL}', f'v_mul_u32_u24 v4, {YP}, v8', 'v_add3_u32 v5, v4, v9, s36', 'v_add3_u32 v4, v4, v11, s36',
      's_waitcnt lgkmcnt(0)','s_barrier')
    a('ds_read_b128 v[20:23], v4','ds_read_b128 v[24:27], v4 offset:512','ds_read_b32 v28, v5 offset:1024','s_waitcnt vmcnt(0)')
    unpack(a,64,100,9)
    a('s_waitcnt lgkmcnt(0)')
    unpack(a,30,20,9)
    for i in range(18): a(f'v_add_f32 v{64+i}, v{64+i}, v{30+i}')
    for i in range(9): a(f'v_cvt_pk_bf16_f32 v{100+i}, v{64+2*i}, v{65+2*i}')
    a(f's_add_u32 s36, s35, 0x{HH:x}', f's_add_u32 s37, s35, 0x{HN:x}')
    rowio(a,'store',100,12,99,'s[16:19]','s36')
    unpack(a,64,100,9); unpack(a,30,100,9)
    layernorm(a,64,84,120)
    rowio(a,'store',84,12,99,'s[16:19]','s37')
    for i in range(18): a(f'v_add_f32 v{30+i}, v{30+i}, v{64+i}')
    for i in range(9): a(f'v_cvt_pk_bf16_f32 v{20+i}, v{30+2*i}, v{31+2*i}')
    rowio(a,'store',20,12,99,'s[24:27]','s35')
    unpack(a,30,110,9)
    a('v_mul_f32 v50, v64, v30')
    for i in range(1,18): a(f'v_fmac_f32 v50, v{64+i}, v{30+i}')
    red32(a,50,51)
    a('''v_cvt_pk_bf16_f32 v50, v50, v50
    v_and_b32 v50, 0xffff0000, v50
    v_ashrrev_i32 v51, 31, v50
    v_or_b32 v51, 0x80000000, v51
    v_xor_b32 v50, v50, v51
    v_and_b32 v50, 0xffff0000, v50
    v_lshlrev_b32 v52, 5, v8
    v_add_u32 v52, s34, v52
    v_sub_u32 v53, 0xffff, v52
    v_or_b32 v50, v50, v53
    v_lshlrev_b32 v52, 2, v52
    s_mov_b64 exec, 0x0000000100000001''')
    a(f's_mov_b32 s36, 0x{RK:x}', 'buffer_store_dword v50, v52, s[16:19], s36 offen')
    a.lab('K3_END'); a('s_endpgm')
    return a.txt(), 148, YL+8*YP
```

```python
from common import *
def k4():
    a=A()
    RED=55296
    a('''s_load_dwordx4 s[8:11], s[0:1], 40
    s_load_dwordx2 s[4:5], s[0:1], 56
    s_load_dwordx2 s[6:7], s[0:1], 80
    v_and_b32 v1, 63, v0
    v_lshrrev_b32 v3, 6, v0
    s_cmp_ge_u32 s2, 288
    s_cbranch_scc1 K4_END
    v_readfirstlane_b32 s3, v3
    s_and_b32 s28, s2, 7
    s_mul_i32 s28, s28, 36
    s_lshr_b32 s29, s2, 3
    s_add_u32 s28, s28, s29
    v_lshlrev_b32 v2, 4, v1
    s_waitcnt lgkmcnt(0)''')
    srd(a,16,6,WS_SZ); srd(a,20,8,5308416); srd(a,24,10,5308416); srd(a,12,4,5308416)
    a(f's_mov_b32 s30, 0x{RK:x}', f's_mov_b32 s31, 0x{RK+4096:x}')
    for n in range(8): a(f'buffer_load_dwordx4 {vr(20+4*n,4)}, v2, s[16:19], s{30+n//4} offen offset:{(n%4)*1024}')
    a('''v_lshrrev_b32 v3, 1, v1
    v_mul_u32_u24 v3, 9216, v3
    v_and_b32 v4, 1, v1
    v_lshl_add_u32 v3, v4, 4, v3
    s_mul_i32 s32, s3, 884736
    s_lshl_b32 s33, s28, 5
    s_add_u32 s32, s32, s33
    s_mul_i32 s34, s3, 9216
    s_mul_i32 s35, s28, 18432
    s_mul_i32 s33, s3, 192
    s_add_u32 s35, s35, s33
    s_mov_b32 s36, 43691''')
    for n in range(3):
        for m in range(2):
            a(f's_add_u32 m0, s34, {m*3072+n*1024}', f's_add_u32 s33, s32, {n*32*9216}', f'buffer_load_dwordx4 v3, s[{20+4*m}:{23+4*m}], s33 offen lds')
    for n in range(3):
        a(f'v_add_u32 v4, {64*n}, v1', 'v_mul_lo_u32 v5, v4, s36', 'v_lshrrev_b32 v5, 19, v5', 'v_mul_u32_u24 v6, 12, v5', 'v_sub_u32 v4, v4, v6',
          'v_mul_u32_u24 v5, 1152, v5', 'v_lshl_add_u32 v4, v4, 4, v5', f's_add_u32 m0, s34, {6144+n*1024}', 's_nop 0', 'buffer_load_dwordx4 v4, s[12:15], s35 offen lds')
    a('''v_lshrrev_b32 v13, 4, v1
    v_and_b32 v14, 15, v1
    v_bfe_u32 v5, v1, 2, 2
    v_and_b32 v6, 3, v1
    v_lshl_add_u32 v7, v13, 3, v5
    v_lshlrev_b32 v7, 5, v7
    v_lshl_add_u32 v7, v6, 3, v7
    v_add_u32 v7, s34, v7
    v_lshl_add_u32 v8, v13, 2, v5
    v_mul_u32_u24 v8, 192, v8
    v_lshl_add_u32 v8, v6, 3, v8
    v_add_u32 v8, s34, v8
    s_waitcnt vmcnt(9)
    v_max_u32 v10, v20, v21
    v_min_u32 v11, v20, v21''')
    for n in range(2,32): a(f'v_med3_u32 v11, v10, v11, v{20+n}', f'v_max_u32 v10, v10, v{20+n}')
    def merge(): a('v_min_u32 v17, v10, v15','v_max_u32 v10, v10, v15','v_max3_u32 v11, v11, v16, v17')
    for m in ['quad_perm:[1,0,3,2]','quad_perm:[2,3,0,1]','row_half_mirror','row_mirror']:
        a('s_nop 1', f'v_mov_b32_dpp v15, v10 {m} row_mask:0xf bank_mask:0xf', f'v_mov_b32_dpp v16, v11 {m} row_mask:0xf bank_mask:0xf'); merge()
    for sw in ['v_permlane16_swap_b32','v_permlane32_swap_b32']:
        a('v_mov_b32 v15, v10','v_mov_b32 v16, v11','s_nop 1',f'{sw} v10, v15',f'{sw} v11, v16'); merge()
    a('''v_and_b32 v4, 1, v1
    v_cmp_eq_u32 vcc, 1, v4
    s_nop 1
    v_cndmask_b32 v15, v10, v11, vcc
    v_and_b32 v15, 0xffff, v15
    v_sub_u32 v15, 0xffff, v15
    v_mul_u32_u24 v15, 1152, v15
    v_lshl_add_u32 v15, v13, 4, v15''')
    a(f's_mul_i32 s33, s3, 192', f's_add_u32 s33, s33, 0x{HN:x}')
    for n in range(3): a(f'buffer_load_dwordx4 {vr(20+4*n,4)}, v15, s[16:19], s33 offen offset:{64*n}')
    a('s_or_b32 s33, s2, s3','s_cmp_lg_u32 s33, 0','s_cbranch_scc1 K4_NS','s_mov_b64 exec, 1','v_mov_b32 v5, 0',f's_mov_b32 s33, 0x{SEL:x}',
      'buffer_store_dwordx2 v[10:11], v5, s[16:19], s33 offen','s_mov_b64 exec, -1')
    a.lab('K4_NS')
    a('s_waitcnt vmcnt(0)')
    for m in range(2):
        for n in range(3):
            for jj in range(2): a(f'ds_read_b64_tr_b16 {vr(32+12*m+4*n+2*jj,2)}, v7 offset:{m*3072+n*1024+jj*128}')
    for t in range(6): a(f'ds_read_b64_tr_b16 {vr(64+2*t,2)}, v8 offset:{6144+t*32}')
    a(f's_lshl_b32 s33, s3, 8', f's_add_u32 s33, s33, {RED}', 'v_lshlrev_b32 v5, 4, v13', 'v_lshl_add_u32 v5, v4, 6, v5', 'v_add_u32 v6, s33, v5', f'v_add_u32 v5, {RED}, v5')
    a('s_waitcnt lgkmcnt(6)')
    for m in range(2):
        for n in range(3): mfma(a,56+4*m,32+12*m+4*n,20+4*n,None if n==0 else 56+4*m,kind='16x16x32_bf16')
    a('s_nop 7','s_mov_b64 exec, 0x0003000300030003','ds_write_b128 v6, v[56:59]','ds_write_b128 v6, v[60:63] offset:128','s_mov_b64 exec, -1','s_waitcnt lgkmcnt(0)','s_barrier')
    for w in range(6):
        for m in range(2): a(f'ds_read_b128 {vr(80+8*w+4*m,4)}, v5 offset:{w*256+m*128}')
    a('s_waitcnt lgkmcnt(0)')
    for w in range(1,6):
        for k in range(8): a(f'v_add_f32 v{80+k}, v{80+k}, v{80+8*w+k}')
    for k in range(4): a(f'v_cvt_pk_bf16_f32 v{20+k}, v{80+2*k}, v{81+2*k}')
    unpack(a,80,20,4)
    for k in range(4): a(f'v_mul_f32 v{20+k}, {fl(-1.4426950408889634)}, v{80+k}')
    for k in range(4): a(f'v_exp_f32 v{20+k}, v{20+k}')
    for k in range(4): a(f'v_add_f32 v{20+k}, 1.0, v{20+k}')
    for k in range(4): a(f'v_rcp_f32 v{20+k}, v{20+k}')
    for k in range(4): a(f'v_mul_f32 v{20+k}, v{80+k}, v{20+k}')
    a('v_cvt_pk_bf16_f32 v24, v20, v21','v_cvt_pk_bf16_f32 v25, v22, v23')
    unpack(a,20,24,2)
    for k in range(4): a(f'v_mul_f32 v{20+k}, v{20+k}, v{84+k}')
    a('v_cvt_pk_bf16_f32 v24, v20, v21','v_cvt_pk_bf16_f32 v25, v22, v23')
    a('s_mul_i32 s33, s28, 4608','s_mul_i32 s34, s3, 384','s_add_u32 s33, s33, s34',f's_add_u32 s33, s33, 0x{PART:x}','v_mul_u32_u24 v5, 2304, v14','v_lshl_add_u32 v5, v13, 4, v5')
    for t in range(6): mfma(a,32+4*t,64+2*t,24,kind='16x16x16_bf16',n=2)
    a('s_nop 7','s_mov_b64 exec, 0x0003000300030003')
    for t in range(6): a(f'buffer_store_dwordx4 {vr(32+4*t,4)}, v5, s[16:19], s33 offen offset:{64*t}')
    a.lab('K4_END'); a('s_endpgm')
    return a.txt(), 128, RED+1536
def k5():
    a=A()
    a('''s_load_dwordx2 s[10:11], s[0:1], 64
    s_load_dwordx2 s[6:7], s[0:1], 80
    s_cmp_ge_u32 s2, 36
    s_cbranch_scc1 K5_END
    v_and_b32 v1, 31, v0
    v_lshrrev_b32 v2, 5, v0
    v_mul_u32_u24 v3, 165888, v2
    v_lshl_add_u32 v3, v1, 2, v3
    s_lshl_b32 s28, s2, 7
    s_waitcnt lgkmcnt(0)''')
    a(f's_add_u32 s4, s6, 0x{SEL:x}','s_addc_u32 s5, s7, 0','s_load_dwordx2 s[8:9], s[4:5], 0')
    srd(a,16,6,WS_SZ); srd(a,24,10,2048*1152)
    a(f's_add_u32 s28, s28, 0x{PART:x}')
    for n in range(36): a(f'buffer_load_dword v{8+n}, v3, s[16:19], s28 offen', 's_add_u32 s28, s28, 4608')
    a('''s_waitcnt lgkmcnt(0)
    s_cmp_ge_u32 s2, 18
    s_cselect_b32 s8, s9, s8
    s_cselect_b32 s29, 18, 0
    s_sub_u32 s29, s2, s29
    s_and_b32 s30, s8, 0xffff
    s_sub_u32 s30, 0xffff, s30
    s_mul_i32 s30, s30, 1152
    s_lshl_b32 s29, s29, 6
    s_add_u32 s30, s30, s29
    v_lshlrev_b32 v4, 1, v1''')
    a(f's_add_u32 s31, s30, 0x{HH:x}', f's_add_u32 s32, s30, 0x{HN:x}', 'buffer_load_ushort v5, v4, s[16:19], s31 offen', 'buffer_load_ushort v6, v4, s[16:19], s32 offen')
    a('''s_and_b32 s33, s8, 0xffff0000
    s_ashr_i32 s34, s33, 31
    s_not_b32 s34, s34
    s_or_b32 s34, s34, 0x80000000
    s_xor_b32 s33, s33, s34
    s_and_b32 s33, s33, 0xffff0000
    v_mov_b32 v7, s33''')
    a(f'v_mul_f32 v7, {fl(-1.4426950408889634)}, v7','v_exp_f32 v7, v7','s_nop 0','v_add_f32 v7, 1.0, v7','v_rcp_f32 v7, v7','s_nop 0')
    rbf(a,7,50)
    a('v_lshlrev_b32 v51, 2, v0','s_waitcnt vmcnt(2)')
    for n in range(1,36): a(f'v_add_f32 v8, v8, v{8+n}')
    a('ds_write_b32 v51, v8','s_waitcnt lgkmcnt(0)','s_barrier','v_cmp_gt_u32 vcc, 32, v0','s_and_saveexec_b64 s[34:35], vcc','s_cbranch_execz K5_END')
    for n in range(4): a(f'ds_read2_b32 v[{8+2*n}:{9+2*n}], v51 offset0:{64*n} offset1:{64*n+32}')
    a('s_waitcnt lgkmcnt(0)')
    for n in range(1,8): a(f'v_add_f32 v8, v8, v{8+n}')
    rbf(a,8,50); a('v_mul_f32 v8, v8, v7'); rbf(a,8,50)
    a('s_waitcnt vmcnt(0)','v_lshlrev_b32 v5, 16, v5','v_lshlrev_b32 v6, 16, v6','v_add_f32 v8, v6, v8'); rbf(a,8,50)
    a('v_add_f32 v8, v5, v8','v_cvt_pk_bf16_f32 v8, v8, v8','buffer_store_short v8, v4, s[24:27], s30 offen')
    a.lab('K5_END'); a('s_endpgm')
    return a.txt(), 56, 1024
```

```python
import sys
from common import *
from k1 import k1
from k2 import k2
from k3 import k3
from k4 import k4, k5
N='sequential_preLN__spectral_gfnet__moe_arch_mod__prompt'
ref=open(f'cdna_kernels/{N}.s.ref').read().split('\n')
hdr=[l for l in ref if l.startswith(';') and '@launch' not in l and 'Override' not in l and 'grid=ceil' not in l]
ks=[('fft_rows_kernel',k1,512+nside('K1'),256),('fft_cols_kernel',k2,289+nside('K2'),256),('ifft_rows_kernel',k3,256+nside('K3'),256),('moe_ffn_kernel',k4,288,384),('moe_fin_kernel',k5,36,256)]
out='\n'.join(hdr)+'\n'; body=''; desc=''
for name,f,g,b in ks:
    CUR[0]=f.__name__[1]
    t,vg,lds=f()
    out+=f'; @launch kernel={name} grid=({g},1,1) block=({b},1,1) lds={lds}\n'
    body+=khead(name)+t; desc+=kdesc(name,vg)
out+='.amdgcn_target "amdgcn-amd-amdhsa--gfx950"\n'+body+desc
open(sys.argv[1] if len(sys.argv)>1 else f'cdna_kernels/{N}.s','w').write(out)
```

```python
import struct, os
GFL=os.environ.get('GFL','23'); CUR=['1']
def f2u(x): return struct.unpack('<I', struct.pack('<f', x))[0]
def fl(x): return '0x%08x' % f2u(x)
Y1T=0x0; ZT=0x300000; WT=0x600000; WMAX=0x900000; RK=0x901000; SEL=0x903000
HH=0xA00000; HN=0xD00000; PART=0x1000000; WGT=0x1400000; WUT=0x1A00000; WS_SZ=0x2000000
class A:
    def __init__(s): s.l=[]
    def __call__(s, *lines):
        for x in lines:
            for y in x.strip('\n').split('\n'):
                y=y.strip()
                if y.startswith('s_mov_b64 exec, 0x'):
                    v=int(y.split(',')[1],16)
                    s.l.append(f'    s_mov_b32 exec_lo, 0x{v&0xffffffff:x}'); s.l.append(f'    s_mov_b32 exec_hi, 0x{v>>32:x}')
                elif y.startswith('buffer_store') and 'sc1' not in y: s.l.append('    '+y+(' sc0 sc1' if CUR[0] in GFL else ''))
                else: s.l.append('    '+y)
    def lab(s, n): s.l.append(n+':')
    def txt(s): return '\n'.join(s.l)+'\n'
def srd(a, d, lo, size):
    a(f's_mov_b32 s{d}, s{lo}', f's_and_b32 s{d+1}, s{lo+1}, 0xffff', f's_mov_b32 s{d+2}, 0x{size:x}', f's_mov_b32 s{d+3}, 0x00020000')
def vr(b, n): return f'v[{b}:{b+n-1}]'
def mfma(a, d, x, y, c=None, kind='16x16x32_f16', n=4):
    a(f'v_mfma_f32_{kind} {vr(d,4)}, {vr(x,n)}, {vr(y,n)}, '+('0' if c is None else vr(c,4)))
def frag(a, dc, ds, rowf, base, cjs, N, tmp, dn=None, scale=None):
    n=len(cjs)
    for j,c in enumerate(cjs): a(f'v_fmamk_f32 v{tmp+j}, v{rowf}, {fl(c/N)}, v{base}')
    for j in range(n): a(f'v_cos_f32 v{tmp+8+j}, v{tmp+j}')
    for j in range(n): a(f'v_sin_f32 v{tmp+16+j}, v{tmp+j}')
    for j in range(0,n,2): a(f'v_cvt_pk_f16_f32 v{dc+j//2}, v{tmp+8+j}, v{tmp+9+j}')
    for j in range(0,n,2): a(f'v_cvt_pk_f16_f32 v{ds+j//2}, v{tmp+16+j}, v{tmp+17+j}')
    if dn is not None:
        for j in range(n//2): a(f'v_xor_b32 v{dn+j}, 0x80008000, v{ds+j}')
PAT=[16*(j>>2)+(j&3) for j in range(8)]
def red32(a, v, t, op='v_add_f32'):
    for m in ['quad_perm:[1,0,3,2]','quad_perm:[2,3,0,1]','row_half_mirror','row_mirror']:
        a('s_nop 1', f'{op}_dpp v{v}, v{v}, v{v} {m} row_mask:0xf bank_mask:0xf')
    a(f'v_mov_b32 v{t}, v{v}', 's_nop 1', f'v_permlane16_swap_b32 v{v}, v{t}', f'{op} v{v}, v{v}, v{t}')
def red64(a, v, t, op):
    red32(a, v, t, op)
    a(f'v_mov_b32 v{t}, v{v}', 's_nop 1', f'v_permlane32_swap_b32 v{v}, v{t}', f'{op} v{v}, v{v}, v{t}')
def unpack(a, d, s, n):
    for i in range(n):
        a(f'v_lshlrev_b32 v{d+2*i}, 16, v{s+i}', f'v_and_b32 v{d+2*i+1}, 0xffff0000, v{s+i}')
def rbf(a, v, t):
    a(f'v_cvt_pk_bf16_f32 v{t}, v{v}, v{v}', f'v_lshlrev_b32 v{v}, 16, v{t}')
def layernorm(a, x, o, t):
    a(f'v_add_f32 v{t}, v{x}, v{x+1}')
    for i in range(2,18): a(f'v_add_f32 v{t}, v{t}, v{x+i}')
    red32(a, t, t+1)
    a(f'v_mul_f32 v{t}, {fl(1/576)}, v{t}')
    a(f'v_sub_f32 v{t+3}, v{x}, v{t}', f'v_mul_f32 v{t+2}, v{t+3}, v{t+3}')
    for i in range(1,18): a(f'v_sub_f32 v{t+3+(i&1)}, v{x+i}, v{t}', f'v_fmac_f32 v{t+2}, v{t+3+(i&1)}, v{t+3+(i&1)}')
    red32(a, t+2, t+1)
    a(f'v_mul_f32 v{t+2}, {fl(1/576)}, v{t+2}')
    rbf(a, t, t+1); rbf(a, t+2, t+1)
    a(f'v_add_f32 v{t+2}, {fl(1e-5)}, v{t+2}'); rbf(a, t+2, t+1)
    a(f'v_sqrt_f32 v{t+2}, v{t+2}', 's_nop 0'); rbf(a, t+2, t+1)
    a(f'v_rcp_f32 v{t+3}, v{t+2}')
    for i in range(9):
        a(f'v_sub_f32 v{x+2*i}, v{x+2*i}, v{t}', f'v_sub_f32 v{x+2*i+1}, v{x+2*i+1}, v{t}', f'v_cvt_pk_bf16_f32 v{o+i}, v{x+2*i}, v{x+2*i+1}')
    unpack(a, x, o, 9)
    for i in range(18):
        q=t+4+(i&1)*2
        a(f'v_mul_f32 v{q}, v{x+i}, v{t+3}', f'v_fma_f32 v{q+1}, -v{q}, v{t+2}, v{x+i}', f'v_fma_f32 v{x+i}, v{q+1}, v{t+3}, v{q}')
    for i in range(9): a(f'v_cvt_pk_bf16_f32 v{o+i}, v{x+2*i}, v{x+2*i+1}')
    unpack(a, x, o, 9)
def wscale(a, v, t, sws, inv):
    a(f'v_max3_u32 v{v}, v{v}, v{v+1}, v{v+2}', f'v_max_u32 v{v}, v{v}, v{v+3}')
    red64(a, v, t, 'v_max_u32')
    a(f'v_lshrrev_b32 v{v}, 7, v{v}', f'v_max_u32 v{v}, 1, v{v}', f'v_min_u32 v{v}, 0xfd, v{v}')
    if not inv: a(f'v_sub_u32 v{v}, 0xfe, v{v}')
    a(f'v_lshlrev_b32 v{v}, 23, v{v}')
def kdesc(name, vg, sg=72):
    vg=(vg+3)//4*4
    return f'''.section .rodata,"a"
.p2align 6
.amdhsa_kernel {name}
  .amdhsa_next_free_vgpr {vg}
  .amdhsa_next_free_sgpr {sg}
  .amdhsa_accum_offset {vg}
  .amdhsa_group_segment_fixed_size 0
  .amdhsa_kernarg_size 88
  .amdhsa_user_sgpr_count 2
  .amdhsa_user_sgpr_kernarg_segment_ptr 1
  .amdhsa_system_sgpr_workgroup_id_x 1
.end_amdhsa_kernel
'''
def khead(name):
    return f'.text\n.globl {name}\n.p2align 8\n.type {name},@function\n{name}:\n'

def rowio(a, op, r, va, vb, srd_, so):
    a(f'buffer_{op}_dwordx4 {vr(r,4)}, v{va}, {srd_}, {so} offen', f'buffer_{op}_dwordx4 {vr(r+4,4)}, v{va}, {srd_}, {so} offen offset:512',
      f'buffer_{op}_dword v{r+8}, v{vb}, {srd_}, {so} offen offset:1024')

import os
INSTR=int(os.environ.get('INSTR','0'))
TS=0x1180000
def stamp(a,k):
    if INSTR: a(f's_memrealtime s[{50+2*k}:{51+2*k}]')
def fin(a,kidx,n):
    if not INSTR: return
    a('s_waitcnt vmcnt(0) lgkmcnt(0)'); stamp(a,n); a('s_waitcnt lgkmcnt(0)','s_mov_b64 exec, 1', 's_lshl_b32 s48, s2, 3', 's_add_u32 s48, s48, s3', 's_lshl_b32 s48, s48, 5', f's_add_u32 s48, s48, 0x{TS+kidx*0x0:x}' if 0 else f's_add_u32 s48, s48, 0x{TS+kidx*0x20000:x}', 'v_mov_b32 v0, 0')
    for k in range(n+1): a(f'v_mov_b32 v1, s{50+2*k}', f'buffer_store_dword v1, v0, s[16:19], s48 offen offset:{4*k}')

SIDE=dict(x.split(':') for x in os.environ.get('SIDE','K1:d,K2:g,K3:u').split(','))
SFL=os.environ.get('SFL','sc0 sc1')
def nside(K): return 216 if SIDE.get(K) else 0
def side(a,K,first):
    a.lab(K+'_SIDE')
    jobs=SIDE.get(K,'')
    if not jobs: return
    a(f's_sub_u32 s28, s2, {first}','s_cmp_ge_u32 s28, 216',f's_cbranch_scc1 {K}_END','s_waitcnt lgkmcnt(0)',
      's_load_dwordx4 s[8:11], s[0:1], 40','s_load_dwordx2 s[4:5], s[0:1], 56','s_load_dwordx2 s[6:7], s[0:1], 80',
      'v_readfirstlane_b32 s3, v3','s_lshl_b32 s28, s28, 2','s_add_u32 s28, s28, s3',
      's_mul_i32 s29, s28, 43691','s_lshr_b32 s29, s29, 18','s_mul_i32 s30, s29, 6','s_sub_u32 s30, s28, s30',
      's_mul_i32 s31, s29, 36864','s_mul_i32 s32, s30, 1536','s_add_u32 s31, s31, s32',
      's_mul_i32 s32, s30, 884736','s_lshl_b32 s33, s29, 7','s_add_u32 s32, s32, s33',
      's_mul_i32 s33, s28, 6144','s_add_u32 s34, s33, 3072',
      'v_lshrrev_b32 v4, 3, v1','v_bfe_u32 v5, v1, 1, 2','v_and_b32 v6, 1, v1','v_mul_u32_u24 v5, 9216, v5','v_lshl_add_u32 v5, v4, 5, v5','v_lshl_add_u32 v5, v6, 4, v5',
      'v_and_b32 v6, 7, v1','v_mul_u32_u24 v4, 18432, v4','v_lshl_add_u32 v4, v6, 4, v4','v_lshlrev_b32 v6, 4, v1','s_waitcnt lgkmcnt(0)')
    srd(a,16,6,WS_SZ); srd(a,20,8,5308416); srd(a,24,10,5308416); srd(a,12,4,5308416)
    for i,j in enumerate(jobs):
        for n in range(6):
            if j=='d': a(f'buffer_load_dwordx4 {vr(8+24*i+4*n,4)}, v6, s[12:15], s{33+n//3} offen offset:{(n%3)*1024}')
            else: a(f'buffer_load_dwordx4 {vr(8+24*i+4*n,4)}, v5, s[{20 if j=="g" else 24}:{23 if j=="g" else 27}], s31 offen offset:{n*256}')
    a(f's_waitcnt vmcnt({6*jobs.count("d")})'); done=0
    for i,j in enumerate(jobs):
        if j=='d': continue
        for n in range(6):
            a(f's_add_u32 s35, s32, 0x{(WGT if j=="g" else WUT)+n*147456:x}',
              f'buffer_store_dwordx4 {vr(8+24*i+4*n,4)}, v4, s[16:19], s35 offen {SFL}'); done+=1
    a('s_waitcnt vmcnt(0)')
```

```python
from common import *
def k1():
    a=A(); stamp(a,0)
    a('''s_load_dwordx2 s[4:5], s[0:1], 0
    s_load_dwordx4 s[8:11], s[0:1], 8
    s_load_dwordx2 s[6:7], s[0:1], 80
    v_and_b32 v1, 63, v0
    v_lshrrev_b32 v3, 6, v0
    s_cmp_ge_u32 s2, 512
    s_cbranch_scc1 K1_SIDE
    v_readfirstlane_b32 s3, v3
    s_waitcnt lgkmcnt(0)''')
    srd(a,16,6,WS_SZ)
    a('s_cmp_ge_u32 s2, 256','s_cbranch_scc1 K1_W')
    srd(a,12,4,2048*1152)
    a('''s_lshr_b32 s28, s2, 3
    s_and_b32 s29, s2, 1
    s_bfe_u32 s30, s2, 0x20001
    s_lshl_b32 s31, s29, 5
    s_lshr_b32 s32, s3, 1
    s_lshl_b32 s33, s32, 4
    s_add_u32 s31, s31, s33
    s_lshl_b32 s33, s30, 2
    s_add_u32 s31, s31, s33
    s_and_b32 s33, s3, 1
    s_lshl_b32 s34, s33, 1
    s_add_u32 s31, s31, s34
    s_lshl_b32 s31, s31, 5
    s_add_u32 s31, s31, s28
    s_mul_i32 s31, s31, 1152
    v_lshrrev_b32 v3, 5, v1
    v_mul_u32_u24 v2, 36864, v3
    v_and_b32 v3, 31, v1
    v_lshl_add_u32 v13, v3, 2, v2
    v_lshl_add_u32 v2, v3, 4, v2
    buffer_load_dwordx4 v[4:7], v2, s[12:15], s31 offen
    buffer_load_dwordx4 v[8:11], v2, s[12:15], s31 offen offset:512
    buffer_load_dword v12, v13, s[12:15], s31 offen offset:1024
    v_lshrrev_b32 v13, 4, v1
    v_and_b32 v14, 15, v1
    v_cvt_f32_u32 v15, v14
    v_cvt_f32_u32 v16, v13
    v_mul_f32 v17, v15, v16''')
    a(f'v_mul_f32 v18, {fl(8/18)}, v17')
    frag(a,20,28,15,18,list(range(8)),18,56,dn=24)
    a('s_mov_b64 exec, 0xffffffff00000000')
    for r in (21,22,23,25,26,27): a(f'v_mov_b32 v{r}, 0')
    a('s_mov_b64 exec, 0xffff000000000000','v_mov_b32 v20, 0','v_mov_b32 v24, 0','s_mov_b64 exec, -1')
    a(f'v_mul_f32 v18, {fl(4/576)}, v17')
    for j in range(8): a(f'v_fmamk_f32 v{56+j}, v15, {fl(PAT[j]/576)}, v18')
    for j in range(8): a(f'v_cos_f32 v{32+j}, v{56+j}')
    for j in range(8): a(f'v_sin_f32 v{40+j}, v{56+j}')
    a('s_lshl_b32 s34, s33, 4','v_add_u32 v18, s34, v14','v_cvt_f32_u32 v18, v18','v_mul_f32 v19, v18, v16',f'v_mul_f32 v19, {fl(8/32)}, v19')
    for j in range(16): a(f'v_mul_f32 v{32+j}, {fl(1/24)}, v{32+j}')
    frag(a,48,52,18,19,list(range(8)),32,56)
    a('s_mul_i32 s35, s32, 0x80008000')
    for j in range(4): a(f'v_xor_b32 v{52+j}, s35, v{52+j}')
    a('''v_lshrrev_b32 v3, 5, v1
    v_mul_u32_u24 v18, 1152, v3
    v_and_b32 v3, 31, v1
    s_mul_i32 s36, s3, 2304
    v_add_u32 v18, s36, v18
    v_lshl_add_u32 v118, v3, 2, v18
    v_lshl_add_u32 v18, v3, 4, v18
    v_bfe_u32 v3, v1, 2, 2
    v_lshl_add_u32 v3, v13, 3, v3
    v_min_u32 v19, 17, v3
    v_add_u32 v3, 4, v3
    v_min_u32 v3, 17, v3
    v_and_b32 v116, 3, v1
    v_lshlrev_b32 v116, 3, v116
    v_add_u32 v116, s36, v116
    v_lshl_add_u32 v117, v3, 6, v116
    v_lshl_add_u32 v116, v19, 6, v116
    s_waitcnt vmcnt(0)''')
    stamp(a,1)
    unpack(a,80,4,9)
    layernorm(a,80,100,56)
    for i in range(9): a(f'v_cvt_pkrtz_f16_f32 v{100+i}, v{80+2*i}, v{81+2*i}')
    a('ds_write_b128 v18, v[100:103]','ds_write_b128 v18, v[104:107] offset:512','ds_write_b32 v118, v108 offset:1024')
    stamp(a,2)
    for h,(A0,D0) in enumerate(((56,64),(80,88))):
        for t in range(2):
            a(f'ds_read_b64_tr_b16 {vr(A0+4*t,2)}, v116 offset:{h*1152+t*32}', f'ds_read_b64_tr_b16 {vr(A0+4*t+2,2)}, v117 offset:{h*1152+t*32}')
    a('''v_mul_u32_u24 v18, 528, v14
    v_lshl_add_u32 v18, v13, 3, v18
    s_lshl_b32 s36, s3, 7
    s_add_u32 s36, s36, 9216
    v_add_u32 v18, s36, v18
    v_lshrrev_b32 v3, 2, v14
    v_mul_u32_u24 v19, 528, v3
    v_and_b32 v3, 3, v14
    v_lshl_add_u32 v19, v3, 6, v19
    v_lshl_add_u32 v19, v13, 4, v19
    s_mul_i32 s36, s32, 8448
    s_add_u32 s37, s36, 9216
    s_sub_u32 s36, 17664, s36
    v_lshl_add_u32 v2, v13, 5, v14
    v_add_u32 v2, s34, v2
    v_lshlrev_b32 v2, 13, v2''')
    for h,(A0,D0) in enumerate(((56,64),(80,88))):
        a(f's_waitcnt lgkmcnt({4 if h==0 else 0})')
        for t in range(2):
            mfma(a,D0+4*t,A0+4*t,20); mfma(a,D0+8+4*t,A0+4*t,24)
    a('v_add_u32 v16, s37, v19','v_add_u32 v17, s36, v19','s_nop 4')
    for h,(A0,D0) in enumerate(((56,64),(80,88))):
        O=104+8*h
        for t in range(2):
            for r in range(4):
                j=4*t+r; re=D0+j; im=D0+8+j
                a(f'v_mul_f32 v{120+r}, v{re}, v{32+j}', f'v_mul_f32 v{124+r}, v{im}, v{32+j}',
                  f'v_fmac_f32 v{120+r}, v{im}, v{40+j}', f'v_fma_f32 v{124+r}, -v{re}, v{40+j}, v{124+r}')
            a(f'v_cvt_pk_f16_f32 v{O+4*t}, v120, v121', f'v_cvt_pk_f16_f32 v{O+4*t+1}, v122, v123',
              f'v_cvt_pk_f16_f32 v{O+4*t+2}, v124, v125', f'v_cvt_pk_f16_f32 v{O+4*t+3}, v126, v127')
            a(f'ds_write_b64 v18, {vr(O+4*t,2)} offset:{h*64+t*32}', f'ds_write_b64 v18, {vr(O+4*t+2,2)} offset:{8448+h*64+t*32}')
    a('''s_lshl_b32 s38, s32, 12
    s_lshl_b32 s39, s29, 11
    s_add_u32 s38, s38, s39
    s_lshr_b32 s39, s28, 4
    s_lshl_b32 s39, s39, 10
    s_add_u32 s38, s38, s39
    s_lshl_b32 s39, s30, 8
    s_add_u32 s38, s38, s39
    s_and_b32 s39, s28, 15
    s_lshl_b32 s39, s39, 4
    s_add_u32 s38, s38, s39
    s_add_u32 s39, s38, 0x100000
    s_add_u32 s40, s38, 0x200000
    s_waitcnt lgkmcnt(0)
    s_barrier''')
    stamp(a,3)
    for P in range(3):
        for rho in range(2):
            q=2*P+rho
            a(f'ds_read_b128 {vr(56+8*q,4)}, v16 offset:{P*2112+rho*256}', f'ds_read_b128 {vr(60+8*q,4)}, v17 offset:{P*2112+rho*256}')
    for q in range(6):
        a(f's_waitcnt lgkmcnt({10-2*q})')
        mfma(a,104+4*q,56+8*q,48); mfma(a,104+4*q,60+8*q,52,104+4*q)
    a('s_nop 7')
    for P in range(3):
        for k in range(4): a(f'v_cvt_pk_f16_f32 v{56+4*P+k}, v{104+8*P+2*k}, v{105+8*P+2*k}')
        if P==2: a('s_mov_b64 exec, 0xffffffff')
        a(f'buffer_store_dwordx4 {vr(56+4*P,4)}, v2, s[16:19], s{38+P} offen')
    stamp(a,4); fin(a,0,5)
    a('s_endpgm')
    a.lab('K1_W')
    srd(a,20,8,2048*578); srd(a,24,10,2048*578)
    a('''s_sub_u32 s28, s2, 256
    s_and_b32 s29, s28, 7
    s_lshl_b32 s29, s29, 5
    s_lshr_b32 s28, s28, 3
    s_add_u32 s28, s28, s29
    s_mul_i32 s29, s28, 4624
    v_lshlrev_b32 v2, 4, v0
    v_add_u32 v3, 0x1000, v2
    v_mov_b32 v20, 0x7fffffff
    v_cmp_gt_u32 vcc, 33, v0
    s_nop 1
    v_cndmask_b32 v20, v20, v3, vcc
    buffer_load_dwordx4 v[4:7], v2, s[20:23], s29 offen
    buffer_load_dwordx4 v[8:11], v2, s[24:27], s29 offen
    buffer_load_dwordx4 v[12:15], v20, s[20:23], s29 offen
    buffer_load_dwordx4 v[16:19], v20, s[24:27], s29 offen
    v_min_u32 v3, 0x1210, v3
    s_waitcnt vmcnt(0)
    ds_write_b128 v2, v[4:7]
    ds_write_b128 v2, v[8:11] offset:4640
    ds_write_b128 v3, v[12:15]
    ds_write_b128 v3, v[16:19] offset:4640''')
    for i in range(16): a(f'v_and_b32 v{24+i}, 0x7fff7fff, v{4+i}')
    for i in range(1,16): a(f'v_pk_max_u16 v24, v24, v{24+i}')
    a('v_lshrrev_b32 v25, 16, v24','v_and_b32 v24, 0xffff, v24','v_max_u32 v24, v24, v25')
    red64(a,24,25,'v_max_u32')
    a('''s_lshl_b32 s30, s3, 2
    s_add_u32 s30, s30, 9296
    v_mov_b32 v25, s30
    ds_write_b32 v25, v24
    v_and_b32 v21, 1, v0
    v_mul_u32_u24 v22, 2312, v21
    v_and_b32 v23, 0xfe, v0
    v_add_u32 v22, v22, v23
    v_lshlrev_b32 v23, 12, v23
    v_lshl_add_u32 v23, v21, 4, v23
    s_lshl_b32 s31, s28, 5''')
    a(f's_add_u32 s31, s31, 0x{WT:x}', 's_add_u32 s32, s31, 0x100000', 's_add_u32 s33, s31, 0x200000', 's_waitcnt lgkmcnt(0)','s_barrier')
    for rd in range(3):
        for rr in range(4):
            a(f'ds_read_u16 v{4+4*rd+rr}, v22 offset:{rr*578+rd*256}', f'ds_read_u16 v{28+4*rd+rr}, v22 offset:{4640+rr*578+rd*256}')
    a('v_mov_b32 v25, 9296','ds_read_b128 v[24:27], v25','s_waitcnt lgkmcnt(0)')
    for q in range(12): a(f'v_lshl_or_b32 v{4+q}, v{28+q}, 16, v{4+q}')
    a('buffer_store_dwordx4 v[4:7], v23, s[16:19], s31 offen','buffer_store_dwordx4 v[8:11], v23, s[16:19], s32 offen',
      'v_cmp_gt_u32 vcc, 66, v0','s_and_saveexec_b64 s[34:35], vcc','s_cbranch_execz K1_END',
      'buffer_store_dwordx4 v[12:15], v23, s[16:19], s33 offen','s_waitcnt lgkmcnt(0)',
      'v_max3_u32 v24, v24, v25, v26','v_max_u32 v24, v24, v27','s_lshl_b32 s28, s28, 2',f's_add_u32 s28, s28, 0x{WMAX:x}',
      'v_cmp_eq_u32 vcc, 0, v0','s_and_saveexec_b64 s[34:35], vcc','s_cbranch_execz K1_END','v_mov_b32 v2, 0','buffer_store_dword v24, v2, s[16:19], s28 offen')
    a('s_endpgm'); side(a,'K1',512)
    a.lab('K1_END'); a('s_endpgm')
    return a.txt(), 128, 26112
```

```python
from common import *
def cmul_pack(a, re, im, c, s, O, sign, T):
    for r in range(4):
        a(f'v_mul_f32 v{T+r}, v{re+r}, v{c+r}', f'v_mul_f32 v{T+4+r}, v{im+r}, v{c+r}')
        if sign<0: a(f'v_fmac_f32 v{T+r}, v{im+r}, v{s+r}', f'v_fma_f32 v{T+4+r}, -v{re+r}, v{s+r}, v{T+4+r}')
        else: a(f'v_fma_f32 v{T+r}, -v{im+r}, v{s+r}, v{T+r}', f'v_fmac_f32 v{T+4+r}, v{re+r}, v{s+r}')
    ore,oim=O
    a(f'v_cvt_pk_f16_f32 v{ore}, v{T}, v{T+1}', f'v_cvt_pk_f16_f32 v{ore+1}, v{T+2}, v{T+3}',
      f'v_cvt_pk_f16_f32 v{oim}, v{T+4}, v{T+5}', f'v_cvt_pk_f16_f32 v{oim+1}, v{T+6}, v{T+7}')
def k2():
    a=A(); stamp(a,0)
    a('''s_load_dwordx2 s[6:7], s[0:1], 80
    v_and_b32 v1, 63, v0
    v_lshrrev_b32 v3, 6, v0
    s_cmp_ge_u32 s2, 289
    s_cbranch_scc1 K2_SIDE
    v_readfirstlane_b32 s3, v3
    s_lshr_b32 s28, s2, 5
    s_add_u32 s28, s28, 1
    s_and_b32 s29, s2, 31
    s_cmp_lt_u32 s2, 256
    s_cbranch_scc1 K2_A
    s_mov_b32 s28, 0
    s_sub_u32 s29, s2, 256
    s_cmp_lt_u32 s2, 273
    s_cbranch_scc1 K2_A
    s_mov_b32 s28, 9
    s_sub_u32 s29, s2, 273''')
    a.lab('K2_A')
    a('''s_lshl_b32 s30, s28, 5
    s_add_u32 s30, s30, s29
    s_lshl_b32 s30, s30, 13
    s_mul_i32 s31, s29, 18
    s_add_u32 s31, s31, s28
    s_sub_u32 s32, 576, s31
    s_cmp_gt_u32 s31, 288
    s_cselect_b32 s32, s32, s31
    s_cselect_b32 s33, -1, 0
    s_cselect_b32 s34, 0x80000000, 0
    s_lshl_b32 s32, s32, 13''')
    a(f's_add_u32 s32, s32, 0x{WT:x}', 's_mov_b32 s35, 2.0', 's_cmp_eq_u32 s31, 0', 's_cselect_b32 s35, 1.0, s35', 's_cmp_eq_u32 s31, 288', 's_cselect_b32 s35, 1.0, s35')
    a('v_lshlrev_b32 v2, 4, v1','s_waitcnt lgkmcnt(0)')
    srd(a,16,6,WS_SZ)
    a('s_add_u32 s36, s30, 4096')
    for p in range(2):
        for q in range(4): a(f'buffer_load_dwordx4 {vr(64+16*p+4*q,4)}, v2, s[16:19], s{30 if p==0 else 36} offen offset:{q*1024}')
    a(f's_mov_b32 s37, 0x{WMAX:x}', 'buffer_load_dwordx4 v[56:59], v2, s[16:19], s37 offen')
    a('''v_lshrrev_b32 v13, 4, v1
    v_and_b32 v14, 15, v1
    s_lshl_b32 s38, s3, 4
    v_add_u32 v15, s38, v14
    v_lshl_add_u32 v3, v13, 8, v15''')
    for t in range(2):
        for r in range(4):
            j=4*t+r
            a(f'v_add_u32 v4, {64*(16*t+r)}, v3', 'v_xor_b32 v4, s33, v4', 'v_subrev_u32 v4, s33, v4', 'v_and_b32 v4, 0x7ff, v4', 'v_lshlrev_b32 v4, 2, v4',
              f'buffer_load_dword v{48+j}, v4, s[16:19], s32 offen')
    a('''v_cvt_f32_u32 v15, v15
    v_cvt_f32_u32 v16, v13
    v_cvt_f32_u32 v17, v14
    v_mul_f32 v18, v15, v16''')
    a(f'v_mul_f32 v19, {fl(4/64)}, v18')
    for u in range(2): frag(a,96+12*u,100+12*u,15,19,[32*u+c for c in PAT],64,20,dn=104+12*u)
    for t in range(2):
        a(f'v_add_f32 v4, {fl(16.0*t)}, v17', 'v_mul_f32 v5, v4, v16', f'v_mul_f32 v5, {fl(4/32)}, v5')
        frag(a,120+12*t,124+12*t,4,5,PAT,32,20,dn=128+12*t)
    sc=2048**-0.5
    a(f'v_mul_f32 v19, {fl(4/2048)}, v18')
    for j in range(8): a(f'v_fmamk_f32 v{20+j}, v15, {fl(PAT[j]/2048)}, v19')
    a('v_lshlrev_b32 v4, 2, v13','v_add_u32 v4, s38, v4','v_cvt_f32_u32 v4, v4',f'v_mul_f32 v4, {fl(1/2048)}, v4')
    for t in range(2):
        a(f'v_add_f32 v5, {fl(16.0*t)}, v17', 'v_mul_f32 v6, v5, v4')
        for r in range(4): a(f'v_fmamk_f32 v{28+4*t+r}, v5, {fl(r/2048)}, v6')
    for j in range(8): a(f'v_cos_f32 v{144+j}, v{20+j}', f'v_sin_f32 v{152+j}, v{20+j}', f'v_cos_f32 v{160+j}, v{28+j}', f'v_sin_f32 v{168+j}, v{28+j}')
    a('s_nop 0')
    for j in range(32): a(f'v_mul_f32 v{144+j}, {fl(sc)}, v{144+j}')
    X=lambda p,u,t: 64+16*p+8*u+4*t
    stamp(a,1)
    a('s_waitcnt vmcnt(9)')
    stamp(a,2)
    for t in range(2):
        mfma(a,20+4*t,X(0,0,t),96); mfma(a,28+4*t,X(1,0,t),96)
        mfma(a,20+4*t,X(1,0,t),100,20+4*t); mfma(a,28+4*t,X(0,0,t),104,28+4*t)
        mfma(a,20+4*t,X(0,1,t),108,20+4*t); mfma(a,28+4*t,X(1,1,t),108,28+4*t)
        mfma(a,20+4*t,X(1,1,t),112,20+4*t); mfma(a,28+4*t,X(0,1,t),116,28+4*t)
    a('s_waitcnt vmcnt(8)')
    wscale(a,56,57,None,False)
    a('v_mul_f32 v56, s35, v56')
    for t in range(2): cmul_pack(a,20+4*t,28+4*t,144+4*t,152+4*t,(36+2*t,40+2*t),-1,4)
    a('s_nop 1')
    for t in range(2):
        c=120+12*t
        mfma(a,64+4*t,c,36); mfma(a,72+4*t,c,40); mfma(a,64+4*t,c+4,40,64+4*t); mfma(a,72+4*t,c+8,36,72+4*t)
    a('s_waitcnt vmcnt(0)')
    stamp(a,3)
    for j in range(8):
        a(f'v_lshlrev_b32 v{80+j}, 16, v{48+j}', f'v_and_b32 v{88+j}, 0xffff0000, v{48+j}', f'v_xor_b32 v{88+j}, s34, v{88+j}',
          f'v_mul_f32 v{80+j}, v56, v{80+j}', f'v_mul_f32 v{88+j}, v56, v{88+j}')
    for t in range(2): cmul_pack(a,64+4*t,72+4*t,80+4*t,88+4*t,(36+2*t,40+2*t),+1,4)
    a('s_nop 1')
    for t in range(2):
        c=120+12*t
        mfma(a,20+4*t,36,c); mfma(a,28+4*t,40,c); mfma(a,20+4*t,40,c+8,20+4*t); mfma(a,28+4*t,36,c+4,28+4*t)
    a('s_lshl_b32 s39, s3, 11','v_lshlrev_b32 v3, 3, v1','v_add_u32 v4, s39, v3','s_nop 4')
    for t in range(2): cmul_pack(a,20+4*t,28+4*t,160+4*t,168+4*t,(36+4*t,38+4*t),+1,8)
    for q in range(4): a(f'ds_write_b64 v4, {vr(36+2*q,2)} offset:{q*512}')
    a('s_waitcnt lgkmcnt(0)','s_barrier')
    for u in range(2):
        for q in range(4):
            o=(2*u*2048+q*512)
            a(f'ds_read_b64 {vr(64+16*u+4*q,2)}, v3 offset:{o}', f'ds_read_b64 {vr(66+16*u+4*q,2)}, v3 offset:{o+2048}')
    B=lambda u,t,p: 64+16*u+8*t+4*p
    a(f's_add_u32 s40, s30, 0x{ZT:x}', 's_lshl_b32 s39, s3, 10', 's_add_u32 s40, s40, s39', 's_add_u32 s41, s40, 4096')
    for u in range(2):
        a(f's_waitcnt lgkmcnt({8 if u==0 else 0})')
        c=96+12*u
        for t in range(2):
            mfma(a,20+4*t,c,B(u,t,0),None if u==0 else 20+4*t); mfma(a,28+4*t,c,B(u,t,1),None if u==0 else 28+4*t)
            mfma(a,20+4*t,c+8,B(u,t,1),20+4*t); mfma(a,28+4*t,c+4,B(u,t,0),28+4*t)
    a('s_nop 7')
    for k in range(8): a(f'v_cvt_pk_f16_f32 v{36+k}, v{20+2*k}, v{21+2*k}')
    a('buffer_store_dwordx4 v[36:39], v2, s[16:19], s40 offen','buffer_store_dwordx4 v[40:43], v2, s[16:19], s41 offen')
    stamp(a,4); fin(a,1,5)
    a('s_endpgm'); side(a,'K2',289)
    a.lab('K2_END'); a('s_endpgm')
    return a.txt(), 176, 8192
```

```python
from common import *
def k3():
    a=A(); stamp(a,0)
    PK=176; PL=32*PK
    YL=2*PL; YP=1168
    a('''s_load_dwordx2 s[4:5], s[0:1], 0
    s_load_dwordx2 s[8:9], s[0:1], 32
    s_load_dwordx2 s[10:11], s[0:1], 64
    s_load_dwordx2 s[6:7], s[0:1], 80
    v_and_b32 v1, 63, v0
    v_lshrrev_b32 v3, 6, v0
    s_cmp_ge_u32 s2, 256
    s_cbranch_scc1 K3_SIDE
    v_readfirstlane_b32 s3, v3
    s_lshr_b32 s28, s2, 5
    s_and_b32 s29, s2, 1
    s_lshl_b32 s29, s29, 3
    s_add_u32 s28, s28, s29
    s_bfe_u32 s29, s2, 0x40001
    s_lshl_b32 s30, s29, 8
    s_lshl_b32 s31, s28, 4
    s_add_u32 s30, s30, s31''')
    a(f's_add_u32 s30, s30, 0x{ZT:x}', 's_add_u32 s31, s30, 4096')
    a('''v_mov_b32 v10, 0x7fffffff
    v_lshlrev_b32 v2, 13, v0
    v_subrev_u32 v4, 17, v0
    v_cmp_gt_u32 vcc, 15, v4
    v_and_b32 v5, 63, v0
    v_add_u32 v6, 0x100, v5
    v_cndmask_b32 v2, v2, v10, vcc
    v_lshlrev_b32 v3, 13, v6
    v_bfe_u32 v7, v0, 6, 1
    v_lshl_add_u32 v3, v7, 12, v3
    v_cmp_lt_u32 vcc, 0x7f, v0
    v_cmp_lt_u32 s[32:33], 47, v5
    s_or_b64 vcc, vcc, s[32:33]
    s_waitcnt lgkmcnt(0)''')
    srd(a,16,6,WS_SZ); srd(a,12,4,2048*1152); srd(a,20,8,1152); srd(a,24,10,2048*1152)
    a('''v_cndmask_b32 v3, v3, v10, vcc
    buffer_load_dwordx4 v[64:67], v2, s[16:19], s30 offen
    buffer_load_dwordx4 v[68:71], v2, s[16:19], s31 offen
    buffer_load_dwordx4 v[72:75], v3, s[16:19], s30 offen
    v_lshlrev_b32 v2, 4, v1''')
    a(f's_mov_b32 s37, 0x{WMAX:x}', 'buffer_load_dwordx4 v[56:59], v2, s[16:19], s37 offen')
    a('''s_lshr_b32 s32, s3, 1
    s_and_b32 s33, s3, 1
    s_lshl_b32 s34, s29, 2
    s_lshl_b32 s35, s33, 1
    s_add_u32 s34, s34, s35
    s_lshl_b32 s34, s34, 5
    s_lshl_b32 s35, s32, 4
    s_add_u32 s34, s34, s35
    s_add_u32 s34, s34, s28
    s_mul_i32 s35, s34, 1152
    v_lshrrev_b32 v8, 5, v1
    v_and_b32 v9, 31, v1
    v_lshlrev_b32 v11, 4, v9
    v_lshlrev_b32 v9, 2, v9
    v_mul_u32_u24 v12, 36864, v8
    v_add_u32 v99, v12, v9
    v_add_u32 v12, v12, v11''')
    rowio(a,'load',100,12,99,'s[12:15]','s35'); rowio(a,'load',110,11,9,'s[20:23]','0')
    a(f'''v_and_b32 v4, 31, v0
    v_mul_u32_u24 v4, {PK}, v4
    v_lshrrev_b32 v5, 5, v0
    v_lshl_add_u32 v4, v5, 4, v4
    v_and_b32 v5, 31, v6
    v_mul_u32_u24 v5, {PK}, v5
    v_lshrrev_b32 v6, 5, v6
    v_lshl_add_u32 v5, v6, 4, v5
    v_mul_u32_u24 v7, {PL}, v7
    v_add_u32 v5, v5, v7
    v_lshrrev_b32 v13, 4, v1
    v_and_b32 v14, 15, v1
    s_lshl_b32 s36, s33, 4
    v_add_u32 v15, s36, v14
    v_cvt_f32_u32 v15, v15
    v_cvt_f32_u32 v16, v13
    v_cvt_f32_u32 v17, v14
    v_mul_f32 v18, v15, v16''')
    a(f'v_mul_f32 v19, {fl(8/32)}, v18')
    frag(a,120,124,15,19,list(range(8)),32,20,dn=128)
    a(f'v_mul_f32 v19, {fl(1/576)}, v18')
    for T in range(3): a(f'v_fmamk_f32 v{20+T}, v15, {fl(4*T/576)}, v19')
    for T in range(3): a(f'v_cos_f32 v{132+T}, v{20+T}', f'v_sin_f32 v{135+T}, v{20+T}')
    for mt in range(2):
        a(f'v_add_f32 v24, {fl(16.0*mt)}, v17', 'v_mul_f32 v25, v24, v16', f'v_mul_f32 v25, {fl(1/18)}, v25')
        for T in range(3): a(f'v_fmamk_f32 v{26+T}, v24, {fl(4*T/18)}, v25')
        for T in range(3): a(f'v_cos_f32 v{30+T}, v{26+T}', f'v_sin_f32 v{33+T}, v{26+T}')
        a('s_nop 0')
        for T in range(3): a(f'v_cvt_pk_f16_f32 v{140+4*mt+T}, v{30+T}, -v{33+T}')
        a(f'v_mov_b32 v{143+4*mt}, 0')
    a('s_mov_b64 exec, 0xffffffff00000000','v_mov_b32 v142, 0','v_mov_b32 v146, 0','s_mov_b64 exec, -1')
    for j in range(6): a(f'v_mul_f32 v{132+j}, {fl(1/24)}, v{132+j}')
    a(f'''v_bfe_u32 v6, v1, 2, 2
    v_lshl_add_u32 v6, v13, 3, v6
    v_mul_u32_u24 v6, {PK}, v6
    s_lshl_b32 s36, s32, 3
    v_add_u32 v6, s36, v6
    v_and_b32 v7, 3, v1
    v_min_u32 v19, 1, v7
    v_lshl_add_u32 v19, v19, 4, v6
    v_lshl_add_u32 v6, v7, 4, v6
    s_waitcnt vmcnt(7)
    ds_write_b128 v4, v[64:67]
    ds_write_b128 v4, v[68:71] offset:{PL}
    v_cmp_gt_u32 vcc, 0x80, v0
    s_and_saveexec_b64 s[38:39], vcc
    ds_write_b128 v5, v[72:75]
    s_mov_b64 exec, -1
    s_waitcnt vmcnt(6)''')
    stamp(a,1)
    wscale(a,56,57,None,True)
    a('s_waitcnt lgkmcnt(0)','s_barrier')
    for T in range(3):
        for p in range(2):
            for jj in range(2):
                ad='v6' if T<2 else 'v19'
                a(f'ds_read_b64_tr_b16 {vr(64+8*T+4*p+2*jj,2)}, {ad} offset:{p*PL+jj*4*PK+T*64}')
    for T in range(3):
        a(f's_waitcnt lgkmcnt({8-4*T})')
        zr=64+8*T; zi=zr+4; D=20+8*T
        mfma(a,D,zr,120); mfma(a,D+4,zi,120); mfma(a,D,zi,128,D); mfma(a,D+4,zr,124,D+4)
    a(f's_mul_i32 s36, s32, {4*YP}', 's_lshl_b32 s38, s33, 5', 's_add_u32 s36, s36, s38', f's_add_u32 s36, s36, {YL}',
      'v_lshlrev_b32 v4, 6, v14', 'v_lshl_add_u32 v4, v13, 3, v4', 'v_add_u32 v4, s36, v4', 's_nop 1')
    for r in range(4): a(f'v_mov_b32 v{67+4*r}, 0')
    for T in range(3):
        for r in range(4):
            re=20+8*T+r; im=re+4; c=132+T; s=135+T
            a(f'v_mul_f32 v44, v{re}, v{c}', f'v_mul_f32 v45, v{im}, v{c}', f'v_fma_f32 v44, -v{im}, v{s}, v44', f'v_fmac_f32 v45, v{re}, v{s}',
              f'v_cvt_pk_f16_f32 v{64+4*r+T}, v44, v45')
    a('s_nop 1')
    for r in range(4):
        for mt in range(2): mfma(a,20+8*r+4*mt,64+4*r,140+4*mt)
    a('s_nop 4')
    for r in range(4):
        for mt in range(2):
            D=20+8*r+4*mt
            for k in range(4): a(f'v_mul_f32 v{D+k}, v56, v{D+k}')
            a(f'v_cvt_pk_bf16_f32 v{D}, v{D}, v{D+1}', f'v_cvt_pk_bf16_f32 v{D+1}, v{D+2}, v{D+3}')
        a(f'ds_write_b64 v4, {vr(20+8*r,2)} offset:{r*YP}')
    a('s_mov_b64 exec, 0x0003000300030003')
    for r in range(4): a(f'ds_write_b64 v4, {vr(24+8*r,2)} offset:{r*YP+1024}')
    a('s_mov_b64 exec, -1')
    a(f's_mul_i32 s36, s3, {2*YP}', f's_add_u32 s36, s36, {YL}', f'v_mul_u32_u24 v4, {YP}, v8', 'v_add3_u32 v5, v4, v9, s36', 'v_add3_u32 v4, v4, v11, s36',
      's_waitcnt lgkmcnt(0)','s_barrier')
    stamp(a,2)
    a('ds_read_b128 v[20:23], v4','ds_read_b128 v[24:27], v4 offset:512','ds_read_b32 v28, v5 offset:1024','s_waitcnt vmcnt(0)')
    stamp(a,3)
    unpack(a,64,100,9)
    a('s_waitcnt lgkmcnt(0)')
    unpack(a,30,20,9)
    for i in range(18): a(f'v_add_f32 v{64+i}, v{64+i}, v{30+i}')
    for i in range(9): a(f'v_cvt_pk_bf16_f32 v{100+i}, v{64+2*i}, v{65+2*i}')
    a(f's_add_u32 s36, s35, 0x{HH:x}', f's_add_u32 s37, s35, 0x{HN:x}')
    rowio(a,'store',100,12,99,'s[16:19]','s36')
    unpack(a,64,100,9); unpack(a,30,100,9)
    layernorm(a,64,84,120)
    rowio(a,'store',84,12,99,'s[16:19]','s37')
    for i in range(18): a(f'v_add_f32 v{30+i}, v{30+i}, v{64+i}')
    for i in range(9): a(f'v_cvt_pk_bf16_f32 v{20+i}, v{30+2*i}, v{31+2*i}')
    rowio(a,'store',20,12,99,'s[24:27]','s35')
    unpack(a,30,110,9)
    a('v_mul_f32 v50, v64, v30')
    for i in range(1,18): a(f'v_fmac_f32 v50, v{64+i}, v{30+i}')
    red32(a,50,51)
    a('''v_cvt_pk_bf16_f32 v50, v50, v50
    v_and_b32 v50, 0xffff0000, v50
    v_ashrrev_i32 v51, 31, v50
    v_or_b32 v51, 0x80000000, v51
    v_xor_b32 v50, v50, v51
    v_and_b32 v50, 0xffff0000, v50
    v_lshlrev_b32 v52, 5, v8
    v_add_u32 v52, s34, v52
    v_sub_u32 v53, 0xffff, v52
    v_or_b32 v50, v50, v53
    v_lshlrev_b32 v52, 2, v52
    s_mov_b64 exec, 0x0000000100000001''')
    a(f's_mov_b32 s36, 0x{RK:x}', 'buffer_store_dword v50, v52, s[16:19], s36 offen')
    stamp(a,4); fin(a,2,5)
    a('s_endpgm'); side(a,'K3',256)
    a.lab('K3_END'); a('s_endpgm')
    return a.txt(), 148, YL+8*YP
```

```python
from common import *
def k4():
    a=A(); stamp(a,0)
    RED=55296
    a('''s_load_dwordx4 s[8:11], s[0:1], 40
    s_load_dwordx2 s[4:5], s[0:1], 56
    s_load_dwordx2 s[6:7], s[0:1], 80
    v_and_b32 v1, 63, v0
    v_lshrrev_b32 v3, 6, v0
    s_cmp_ge_u32 s2, 288
    s_cbranch_scc1 K4_END
    v_readfirstlane_b32 s3, v3
    s_and_b32 s28, s2, 7
    s_mul_i32 s28, s28, 36
    s_lshr_b32 s29, s2, 3
    s_add_u32 s28, s28, s29
    v_lshlrev_b32 v2, 4, v1
    s_waitcnt lgkmcnt(0)''')
    srd(a,16,6,WS_SZ); srd(a,20,8,5308416); srd(a,24,10,5308416); srd(a,12,4,5308416)
    a(f's_mov_b32 s30, 0x{RK:x}', f's_mov_b32 s31, 0x{RK+4096:x}')
    for n in range(2): a(f'buffer_load_dwordx4 {vr(20+4*n,4)}, v2, s[16:19], s{30+n//4} offen offset:{(n%4)*1024}')
    a('''s_mul_i32 s32, s3, 3072
    s_mul_i32 s34, s3, 9216
    s_mul_i32 s35, s28, 18432
    s_add_u32 s32, s32, s35
    s_mul_i32 s33, s3, 192
    s_add_u32 s35, s35, s33
    s_mov_b32 s36, 43691''')
    for n in range(3):
        for m in range(2):
            a(f's_add_u32 m0, s34, {m*3072+n*1024}', f's_add_u32 s33, s32, 0x{(WGT,WUT)[m]+n*1024:x}', f'buffer_load_dwordx4 v2, s[16:19], s33 offen lds')
    for n in range(3):
        a(f'v_add_u32 v4, {64*n}, v1', 'v_mul_lo_u32 v5, v4, s36', 'v_lshrrev_b32 v5, 19, v5', 'v_mul_u32_u24 v6, 12, v5', 'v_sub_u32 v4, v4, v6',
          'v_mul_u32_u24 v5, 1152, v5', 'v_lshl_add_u32 v4, v4, 4, v5', f's_add_u32 m0, s34, {6144+n*1024}', 's_nop 0', 'buffer_load_dwordx4 v4, s[12:15], s35 offen lds')
    a('''v_lshrrev_b32 v13, 4, v1
    v_and_b32 v14, 15, v1
    v_bfe_u32 v5, v1, 2, 2
    v_and_b32 v6, 3, v1
    v_lshl_add_u32 v7, v13, 3, v5
    v_lshlrev_b32 v7, 5, v7
    v_lshl_add_u32 v7, v6, 3, v7
    v_add_u32 v7, s34, v7
    v_lshl_add_u32 v8, v13, 2, v5
    v_mul_u32_u24 v8, 192, v8
    v_lshl_add_u32 v8, v6, 3, v8
    v_add_u32 v8, s34, v8
    s_waitcnt vmcnt(9)
    v_max_u32 v10, v20, v21
    v_min_u32 v11, v20, v21''')
    stamp(a,1)
    for n in range(2,8): a(f'v_med3_u32 v11, v10, v11, v{20+n}', f'v_max_u32 v10, v10, v{20+n}')
    def merge(): a('v_min_u32 v17, v10, v15','v_max_u32 v10, v10, v15','v_max3_u32 v11, v11, v16, v17')
    for m in ['quad_perm:[1,0,3,2]','quad_perm:[2,3,0,1]','row_half_mirror','row_mirror']:
        a('s_nop 1', f'v_mov_b32_dpp v15, v10 {m} row_mask:0xf bank_mask:0xf', f'v_mov_b32_dpp v16, v11 {m} row_mask:0xf bank_mask:0xf'); merge()
    for sw in ['v_permlane16_swap_b32','v_permlane32_swap_b32']:
        a('v_mov_b32 v15, v10','v_mov_b32 v16, v11','s_nop 1',f'{sw} v10, v15',f'{sw} v11, v16'); merge()
    a('''v_and_b32 v4, 1, v1
    v_cmp_eq_u32 vcc, 1, v4
    s_nop 1
    v_cndmask_b32 v15, v10, v11, vcc
    v_and_b32 v15, 0xffff, v15
    v_sub_u32 v15, 0xffff, v15
    v_mul_u32_u24 v15, 1152, v15
    v_lshl_add_u32 v15, v13, 4, v15''')
    a(f's_mul_i32 s33, s3, 192', f's_add_u32 s33, s33, 0x{HN:x}')
    for n in range(3): a(f'buffer_load_dwordx4 {vr(20+4*n,4)}, v15, s[16:19], s33 offen offset:{64*n}')
    a('s_or_b32 s33, s2, s3','s_cmp_lg_u32 s33, 0','s_cbranch_scc1 K4_NS','s_mov_b64 exec, 1','v_mov_b32 v5, 0',f's_mov_b32 s33, 0x{SEL:x}',
      'buffer_store_dwordx2 v[10:11], v5, s[16:19], s33 offen','s_mov_b64 exec, -1')
    a.lab('K4_NS')
    stamp(a,2)
    a('s_waitcnt vmcnt(0)')
    stamp(a,3)
    for m in range(2):
        for n in range(3):
            for jj in range(2): a(f'ds_read_b64_tr_b16 {vr(32+12*m+4*n+2*jj,2)}, v7 offset:{m*3072+n*1024+jj*128}')
    for t in range(6): a(f'ds_read_b64_tr_b16 {vr(64+2*t,2)}, v8 offset:{6144+t*32}')
    a(f's_lshl_b32 s33, s3, 8', f's_add_u32 s33, s33, {RED}', 'v_lshlrev_b32 v5, 4, v13', 'v_lshl_add_u32 v5, v4, 6, v5', 'v_add_u32 v6, s33, v5', f'v_add_u32 v5, {RED}, v5')
    a('s_waitcnt lgkmcnt(6)')
    for m in range(2):
        for n in range(3): mfma(a,56+4*m,32+12*m+4*n,20+4*n,None if n==0 else 56+4*m,kind='16x16x32_bf16')
    a('s_nop 7','s_mov_b64 exec, 0x0003000300030003','ds_write_b128 v6, v[56:59]','ds_write_b128 v6, v[60:63] offset:128','s_mov_b64 exec, -1','s_waitcnt lgkmcnt(0)','s_barrier')
    for w in range(6):
        for m in range(2): a(f'ds_read_b128 {vr(80+8*w+4*m,4)}, v5 offset:{w*256+m*128}')
    a('s_waitcnt lgkmcnt(0)')
    for w in range(1,6):
        for k in range(8): a(f'v_add_f32 v{80+k}, v{80+k}, v{80+8*w+k}')
    for k in range(4): a(f'v_cvt_pk_bf16_f32 v{20+k}, v{80+2*k}, v{81+2*k}')
    unpack(a,80,20,4)
    for k in range(4): a(f'v_mul_f32 v{20+k}, {fl(-1.4426950408889634)}, v{80+k}')
    for k in range(4): a(f'v_exp_f32 v{20+k}, v{20+k}')
    for k in range(4): a(f'v_add_f32 v{20+k}, 1.0, v{20+k}')
    for k in range(4): a(f'v_rcp_f32 v{20+k}, v{20+k}')
    for k in range(4): a(f'v_mul_f32 v{20+k}, v{80+k}, v{20+k}')
    a('v_cvt_pk_bf16_f32 v24, v20, v21','v_cvt_pk_bf16_f32 v25, v22, v23')
    unpack(a,20,24,2)
    for k in range(4): a(f'v_mul_f32 v{20+k}, v{20+k}, v{84+k}')
    a('v_cvt_pk_bf16_f32 v24, v20, v21','v_cvt_pk_bf16_f32 v25, v22, v23')
    a('s_mul_i32 s33, s28, 4608','s_mul_i32 s34, s3, 384','s_add_u32 s33, s33, s34',f's_add_u32 s33, s33, 0x{PART:x}','v_mul_u32_u24 v5, 2304, v14','v_lshl_add_u32 v5, v13, 4, v5')
    for t in range(6): mfma(a,32+4*t,64+2*t,24,kind='16x16x16_bf16',n=2)
    a('s_nop 7','s_mov_b64 exec, 0x0003000300030003')
    for t in range(6): a(f'buffer_store_dwordx4 {vr(32+4*t,4)}, v5, s[16:19], s33 offen offset:{64*t}')
    stamp(a,4); fin(a,3,5)
    a.lab('K4_END'); a('s_endpgm')
    return a.txt(), 128, RED+1536
def k5():
    a=A(); stamp(a,0); a('s_mov_b32 s3, 0')
    a('''s_load_dwordx2 s[10:11], s[0:1], 64
    s_load_dwordx2 s[6:7], s[0:1], 80
    s_cmp_ge_u32 s2, 36
    s_cbranch_scc1 K5_END
    v_and_b32 v1, 31, v0
    v_lshrrev_b32 v2, 5, v0
    v_mul_u32_u24 v3, 165888, v2
    v_lshl_add_u32 v3, v1, 2, v3
    s_lshl_b32 s28, s2, 7
    s_waitcnt lgkmcnt(0)''')
    a(f's_add_u32 s4, s6, 0x{SEL:x}','s_addc_u32 s5, s7, 0','s_load_dwordx2 s[8:9], s[4:5], 0')
    srd(a,16,6,WS_SZ); srd(a,24,10,2048*1152)
    a(f's_add_u32 s28, s28, 0x{PART:x}')
    for n in range(36): a(f'buffer_load_dword v{8+n}, v3, s[16:19], s28 offen', 's_add_u32 s28, s28, 4608')
    a('''s_waitcnt lgkmcnt(0)
    s_cmp_ge_u32 s2, 18
    s_cselect_b32 s8, s9, s8
    s_cselect_b32 s29, 18, 0
    s_sub_u32 s29, s2, s29
    s_and_b32 s30, s8, 0xffff
    s_sub_u32 s30, 0xffff, s30
    s_mul_i32 s30, s30, 1152
    s_lshl_b32 s29, s29, 6
    s_add_u32 s30, s30, s29
    v_lshlrev_b32 v4, 1, v1''')
    a(f's_add_u32 s31, s30, 0x{HH:x}', f's_add_u32 s32, s30, 0x{HN:x}', 'buffer_load_ushort v5, v4, s[16:19], s31 offen', 'buffer_load_ushort v6, v4, s[16:19], s32 offen')
    a('''s_and_b32 s33, s8, 0xffff0000
    s_ashr_i32 s34, s33, 31
    s_not_b32 s34, s34
    s_or_b32 s34, s34, 0x80000000
    s_xor_b32 s33, s33, s34
    s_and_b32 s33, s33, 0xffff0000
    v_mov_b32 v7, s33''')
    a(f'v_mul_f32 v7, {fl(-1.4426950408889634)}, v7','v_exp_f32 v7, v7','s_nop 0','v_add_f32 v7, 1.0, v7','v_rcp_f32 v7, v7','s_nop 0')
    rbf(a,7,50)
    a('v_lshlrev_b32 v51, 2, v0','s_waitcnt vmcnt(2)')
    stamp(a,1)
    for n in range(1,36): a(f'v_add_f32 v8, v8, v{8+n}')
    a('ds_write_b32 v51, v8','s_waitcnt lgkmcnt(0)','s_barrier','v_cmp_gt_u32 vcc, 32, v0','s_and_saveexec_b64 s[34:35], vcc','s_cbranch_execz K5_END')
    for n in range(4): a(f'ds_read2_b32 v[{8+2*n}:{9+2*n}], v51 offset0:{64*n} offset1:{64*n+32}')
    a('s_waitcnt lgkmcnt(0)')
    for n in range(1,8): a(f'v_add_f32 v8, v8, v{8+n}')
    rbf(a,8,50); a('v_mul_f32 v8, v8, v7'); rbf(a,8,50)
    a('s_waitcnt vmcnt(0)','v_lshlrev_b32 v5, 16, v5','v_lshlrev_b32 v6, 16, v6','v_add_f32 v8, v6, v8'); rbf(a,8,50)
    a('v_add_f32 v8, v5, v8','v_cvt_pk_bf16_f32 v8, v8, v8','buffer_store_short v8, v4, s[24:27], s30 offen')
    stamp(a,2); fin(a,4,3)
    a.lab('K5_END'); a('s_endpgm')
    return a.txt(), 56, 1024
```

```python
from common import *
def k3():
    a=A(); stamp(a,0)
    PK=176; PL=32*PK
    YL=2*PL; YP=1168
    a('''s_load_dwordx2 s[4:5], s[0:1], 0
    s_load_dwordx2 s[8:9], s[0:1], 32
    s_load_dwordx2 s[10:11], s[0:1], 64
    s_load_dwordx2 s[6:7], s[0:1], 80
    v_and_b32 v1, 63, v0
    v_lshrrev_b32 v3, 6, v0
    s_cmp_ge_u32 s2, 256
    s_cbranch_scc1 K3_SIDE
    v_readfirstlane_b32 s3, v3
    s_lshr_b32 s28, s2, 5
    s_and_b32 s29, s2, 1
    s_lshl_b32 s29, s29, 3
    s_add_u32 s28, s28, s29
    s_bfe_u32 s29, s2, 0x40001
    s_lshl_b32 s30, s29, 8
    s_lshl_b32 s31, s28, 4
    s_add_u32 s30, s30, s31''')
    a(f's_add_u32 s30, s30, 0x{ZT:x}', 's_add_u32 s31, s30, 4096')
    a('''v_mov_b32 v10, 0x7fffffff
    v_lshlrev_b32 v2, 13, v0
    v_subrev_u32 v4, 17, v0
    v_cmp_gt_u32 vcc, 15, v4
    v_and_b32 v5, 63, v0
    v_add_u32 v6, 0x100, v5
    v_cndmask_b32 v2, v2, v10, vcc
    v_lshlrev_b32 v3, 13, v6
    v_bfe_u32 v7, v0, 6, 1
    v_lshl_add_u32 v3, v7, 12, v3
    v_cmp_lt_u32 vcc, 0x7f, v0
    v_cmp_lt_u32 s[32:33], 47, v5
    s_or_b64 vcc, vcc, s[32:33]
    s_waitcnt lgkmcnt(0)''')
    srd(a,16,6,WS_SZ); srd(a,12,4,2048*1152); srd(a,20,8,1152); srd(a,24,10,2048*1152)
    a('''v_cndmask_b32 v3, v3, v10, vcc
    buffer_load_dwordx4 v[64:67], v2, s[16:19], s30 offen
    buffer_load_dwordx4 v[68:71], v2, s[16:19], s31 offen
    buffer_load_dwordx4 v[72:75], v3, s[16:19], s30 offen
    v_lshlrev_b32 v2, 4, v1''')
    a(f's_mov_b32 s37, 0x{WMAX:x}', 'buffer_load_dwordx4 v[56:59], v2, s[16:19], s37 offen')
    a('''s_lshr_b32 s32, s3, 1
    s_and_b32 s33, s3, 1
    s_lshl_b32 s34, s29, 2
    s_lshl_b32 s35, s33, 1
    s_add_u32 s34, s34, s35
    s_lshl_b32 s34, s34, 5
    s_lshl_b32 s35, s32, 4
    s_add_u32 s34, s34, s35
    s_add_u32 s34, s34, s28
    s_mul_i32 s35, s34, 1152
    v_lshrrev_b32 v8, 5, v1
    v_and_b32 v9, 31, v1
    v_lshlrev_b32 v11, 4, v9
    v_lshlrev_b32 v9, 2, v9
    v_mul_u32_u24 v12, 36864, v8
    v_add_u32 v99, v12, v9
    v_add_u32 v12, v12, v11''')
    rowio(a,'load',100,12,99,'s[12:15]','s35'); rowio(a,'load',110,11,9,'s[20:23]','0')
    a(f'''v_and_b32 v4, 31, v0
    v_mul_u32_u24 v4, {PK}, v4
    v_lshrrev_b32 v5, 5, v0
    v_lshl_add_u32 v4, v5, 4, v4
    v_and_b32 v5, 31, v6
    v_mul_u32_u24 v5, {PK}, v5
    v_lshrrev_b32 v6, 5, v6
    v_lshl_add_u32 v5, v6, 4, v5
    v_mul_u32_u24 v7, {PL}, v7
    v_add_u32 v5, v5, v7
    v_lshrrev_b32 v13, 4, v1
    v_and_b32 v14, 15, v1
    s_lshl_b32 s36, s33, 4
    v_add_u32 v15, s36, v14
    v_cvt_f32_u32 v15, v15
    v_cvt_f32_u32 v16, v13
    v_cvt_f32_u32 v17, v14
    v_mul_f32 v18, v15, v16''')
    a(f'v_mul_f32 v19, {fl(8/32)}, v18')
    frag(a,120,124,15,19,list(range(8)),32,20,dn=128)
    a(f'v_mul_f32 v19, {fl(1/576)}, v18')
    for T in range(3): a(f'v_fmamk_f32 v{20+T}, v15, {fl(4*T/576)}, v19')
    for T in range(3): a(f'v_cos_f32 v{132+T}, v{20+T}', f'v_sin_f32 v{135+T}, v{20+T}')
    for mt in range(2):
        a(f'v_add_f32 v24, {fl(16.0*mt)}, v17', 'v_mul_f32 v25, v24, v16', f'v_mul_f32 v25, {fl(1/18)}, v25')
        for T in range(3): a(f'v_fmamk_f32 v{26+T}, v24, {fl(4*T/18)}, v25')
        for T in range(3): a(f'v_cos_f32 v{30+T}, v{26+T}', f'v_sin_f32 v{33+T}, v{26+T}')
        a('s_nop 0')
        for T in range(3): a(f'v_cvt_pk_f16_f32 v{140+4*mt+T}, v{30+T}, -v{33+T}')
        a(f'v_mov_b32 v{143+4*mt}, 0')
    a('s_mov_b64 exec, 0xffffffff00000000','v_mov_b32 v142, 0','v_mov_b32 v146, 0','s_mov_b64 exec, -1')
    for j in range(6): a(f'v_mul_f32 v{132+j}, {fl(1/24)}, v{132+j}')
    a(f'''v_bfe_u32 v6, v1, 2, 2
    v_lshl_add_u32 v6, v13, 3, v6
    v_mul_u32_u24 v6, {PK}, v6
    s_lshl_b32 s36, s32, 3
    v_add_u32 v6, s36, v6
    v_and_b32 v7, 3, v1
    v_min_u32 v19, 1, v7
    v_lshl_add_u32 v19, v19, 4, v6
    v_lshl_add_u32 v6, v7, 4, v6
    s_waitcnt vmcnt(7)
    ds_write_b128 v4, v[64:67]
    ds_write_b128 v4, v[68:71] offset:{PL}
    v_cmp_gt_u32 vcc, 0x80, v0
    s_and_saveexec_b64 s[38:39], vcc
    ds_write_b128 v5, v[72:75]
    s_mov_b64 exec, -1
    s_waitcnt vmcnt(6)''')
    stamp(a,1)
    wscale(a,56,57,None,True)
    a('s_waitcnt lgkmcnt(0)','s_barrier')
    for T in range(3):
        for p in range(2):
            for jj in range(2):
                ad='v6' if T<2 else 'v19'
                a(f'ds_read_b64_tr_b16 {vr(64+8*T+4*p+2*jj,2)}, {ad} offset:{p*PL+jj*4*PK+T*64}')
    for T in range(3):
        a(f's_waitcnt lgkmcnt({8-4*T})')
        zr=64+8*T; zi=zr+4; D=20+8*T
        mfma(a,D,zr,120); mfma(a,D+4,zi,120); mfma(a,D,zi,128,D); mfma(a,D+4,zr,124,D+4)
    a(f's_mul_i32 s36, s32, {4*YP}', 's_lshl_b32 s38, s33, 5', 's_add_u32 s36, s36, s38', f's_add_u32 s36, s36, {YL}',
      'v_lshlrev_b32 v4, 6, v14', 'v_lshl_add_u32 v4, v13, 3, v4', 'v_add_u32 v4, s36, v4', 's_nop 1')
    for r in range(4): a(f'v_mov_b32 v{67+4*r}, 0')
    for T in range(3):
        for r in range(4):
            re=20+8*T+r; im=re+4; c=132+T; s=135+T
            a(f'v_mul_f32 v44, v{re}, v{c}', f'v_mul_f32 v45, v{im}, v{c}', f'v_fma_f32 v44, -v{im}, v{s}, v44', f'v_fmac_f32 v45, v{re}, v{s}',
              f'v_cvt_pk_f16_f32 v{64+4*r+T}, v44, v45')
    a('s_nop 1')
    for r in range(4):
        for mt in range(2): mfma(a,20+8*r+4*mt,64+4*r,140+4*mt)
    a('s_nop 4')
    for r in range(4):
        for mt in range(2):
            D=20+8*r+4*mt
            for k in range(4): a(f'v_mul_f32 v{D+k}, v56, v{D+k}')
            a(f'v_cvt_pk_bf16_f32 v{D}, v{D}, v{D+1}', f'v_cvt_pk_bf16_f32 v{D+1}, v{D+2}, v{D+3}')
        a(f'ds_write_b64 v4, {vr(20+8*r,2)} offset:{r*YP}')
    a('s_mov_b64 exec, 0x0003000300030003')
    for r in range(4): a(f'ds_write_b64 v4, {vr(24+8*r,2)} offset:{r*YP+1024}')
    a('s_mov_b64 exec, -1')
    a(f's_mul_i32 s36, s3, {2*YP}', f's_add_u32 s36, s36, {YL}', f'v_mul_u32_u24 v4, {YP}, v8', 'v_add3_u32 v5, v4, v9, s36', 'v_add3_u32 v4, v4, v11, s36',
      's_waitcnt lgkmcnt(0)','s_barrier')
    stamp(a,2)
    a('ds_read_b128 v[20:23], v4','ds_read_b128 v[24:27], v4 offset:512','ds_read_b32 v28, v5 offset:1024','s_waitcnt vmcnt(0)')
    stamp(a,3)
    unpack(a,64,100,9)
    a('s_waitcnt lgkmcnt(0)')
    unpack(a,30,20,9)
    for i in range(18): a(f'v_add_f32 v{64+i}, v{64+i}, v{30+i}')
    for i in range(9): a(f'v_cvt_pk_bf16_f32 v{100+i}, v{64+2*i}, v{65+2*i}')
    a(f's_add_u32 s36, s35, 0x{HH:x}', f's_add_u32 s37, s35, 0x{HN:x}')
    unpack(a,64,100,9); unpack(a,30,100,9)
    layernorm(a,64,84,120)
    unpack(a,120,110,9)
    a('v_mul_f32 v50, v64, v120')
    for i in range(1,18): a(f'v_fmac_f32 v50, v{64+i}, v{120+i}')
    red32(a,50,51)
    a('''v_cvt_pk_bf16_f32 v50, v50, v50
    v_and_b32 v50, 0xffff0000, v50
    v_ashrrev_i32 v51, 31, v50
    v_or_b32 v51, 0x80000000, v51
    v_xor_b32 v50, v50, v51
    v_and_b32 v50, 0xffff0000, v50
    v_lshlrev_b32 v52, 5, v8
    v_add_u32 v52, s34, v52
    v_sub_u32 v53, 0xffff, v52
    v_or_b32 v50, v50, v53
    s_lshl_b32 s38, s3, 3
    v_lshl_add_u32 v52, v8, 2, s38
    v_mov_b32 v53, 0
    ds_write_b32 v52, v50''')
    for i in range(18): a(f'v_add_f32 v{30+i}, v{30+i}, v{64+i}')
    a('s_waitcnt lgkmcnt(0)','s_barrier','ds_read_b128 v[120:123], v53','ds_read_b128 v[124:127], v53 offset:16')
    for i in range(9): a(f'v_cvt_pk_bf16_f32 v{20+i}, v{30+2*i}, v{31+2*i}')
    rowio(a,'store',20,12,99,'s[24:27]','s35')
    a('v_mov_b32 v54, 0','s_waitcnt lgkmcnt(0)')
    for k in range(8): a(f'v_cmp_gt_u32 vcc, v{120+k}, v50','v_addc_co_u32 v54, vcc, 0, v54, vcc')
    a('v_cmp_gt_u32 vcc, 2, v54','s_lshl_b32 s38, s2, 3',f's_add_u32 s38, s38, 0x{RK:x}','v_lshlrev_b32 v54, 2, v54','s_and_b64 exec, exec, vcc','s_cbranch_execz K3_NS')
    rowio(a,'store',100,12,99,'s[16:19]','s36')
    rowio(a,'store',84,12,99,'s[16:19]','s37')
    a('s_and_b32 exec_lo, exec_lo, 1','s_and_b32 exec_hi, exec_hi, 1','buffer_store_dword v50, v54, s[16:19], s38 offen')
    a.lab('K3_NS')
    stamp(a,4); fin(a,2,5)
    a('s_endpgm'); side(a,'K3',256)
    a.lab('K3_END'); a('s_endpgm')
    return a.txt(), 148, YL+8*YP
```

```python
import struct, os
GFL=os.environ.get('GFL','235'); CUR=['1']
def f2u(x): return struct.unpack('<I', struct.pack('<f', x))[0]
def fl(x): return '0x%08x' % f2u(x)
Y1T=0x0; ZT=0x300000; WT=0x600000; WMAX=0x900000; RK=0x901000; SEL=0x903000; CT=0x908000
HH=0xA00000; HN=0xD00000; PART=0x1000000; WGT=0x1400000; WUT=0x1A00000; WS_SZ=0x2000000
class A:
    def __init__(s): s.l=[]
    def __call__(s, *lines):
        for x in lines:
            for y in x.strip('\n').split('\n'):
                y=y.strip()
                if y.startswith('s_mov_b64 exec, 0x'):
                    v=int(y.split(',')[1],16)
                    s.l.append(f'    s_mov_b32 exec_lo, 0x{v&0xffffffff:x}'); s.l.append(f'    s_mov_b32 exec_hi, 0x{v>>32:x}')
                elif y.startswith('buffer_store') and 'sc1' not in y: s.l.append('    '+y+(' sc0 sc1' if CUR[0] in GFL else ''))
                else: s.l.append('    '+y)
    def lab(s, n): s.l.append(n+':')
    def txt(s): return '\n'.join(s.l)+'\n'
def srd(a, d, lo, size):
    a(f's_mov_b32 s{d}, s{lo}', f's_and_b32 s{d+1}, s{lo+1}, 0xffff', f's_mov_b32 s{d+2}, 0x{size:x}', f's_mov_b32 s{d+3}, 0x00020000')
def vr(b, n): return f'v[{b}:{b+n-1}]'
def mfma(a, d, x, y, c=None, kind='16x16x32_f16', n=4):
    a(f'v_mfma_f32_{kind} {vr(d,4)}, {vr(x,n)}, {vr(y,n)}, '+('0' if c is None else vr(c,4)))
def frag(a, dc, ds, rowf, base, cjs, N, tmp, dn=None, scale=None):
    n=len(cjs)
    for j,c in enumerate(cjs): a(f'v_fmamk_f32 v{tmp+j}, v{rowf}, {fl(c/N)}, v{base}')
    for j in range(n): a(f'v_cos_f32 v{tmp+8+j}, v{tmp+j}')
    for j in range(n): a(f'v_sin_f32 v{tmp+16+j}, v{tmp+j}')
    for j in range(0,n,2): a(f'v_cvt_pk_f16_f32 v{dc+j//2}, v{tmp+8+j}, v{tmp+9+j}')
    for j in range(0,n,2): a(f'v_cvt_pk_f16_f32 v{ds+j//2}, v{tmp+16+j}, v{tmp+17+j}')
    if dn is not None:
        for j in range(n//2): a(f'v_xor_b32 v{dn+j}, 0x80008000, v{ds+j}')
PAT=[16*(j>>2)+(j&3) for j in range(8)]
def red32(a, v, t, op='v_add_f32'):
    for m in ['quad_perm:[1,0,3,2]','quad_perm:[2,3,0,1]','row_half_mirror','row_mirror']:
        a('s_nop 1', f'{op}_dpp v{v}, v{v}, v{v} {m} row_mask:0xf bank_mask:0xf')
    a(f'v_mov_b32 v{t}, v{v}', 's_nop 1', f'v_permlane16_swap_b32 v{v}, v{t}', f'{op} v{v}, v{v}, v{t}')
def red64(a, v, t, op):
    red32(a, v, t, op)
    a(f'v_mov_b32 v{t}, v{v}', 's_nop 1', f'v_permlane32_swap_b32 v{v}, v{t}', f'{op} v{v}, v{v}, v{t}')
def unpack(a, d, s, n):
    for i in range(n):
        a(f'v_lshlrev_b32 v{d+2*i}, 16, v{s+i}', f'v_and_b32 v{d+2*i+1}, 0xffff0000, v{s+i}')
def rbf(a, v, t):
    a(f'v_cvt_pk_bf16_f32 v{t}, v{v}, v{v}', f'v_lshlrev_b32 v{v}, 16, v{t}')
def layernorm(a, x, o, t):
    a(f'v_add_f32 v{t}, v{x}, v{x+1}')
    for i in range(2,18): a(f'v_add_f32 v{t}, v{t}, v{x+i}')
    red32(a, t, t+1)
    a(f'v_mul_f32 v{t}, {fl(1/576)}, v{t}')
    a(f'v_sub_f32 v{t+3}, v{x}, v{t}', f'v_mul_f32 v{t+2}, v{t+3}, v{t+3}')
    for i in range(1,18): a(f'v_sub_f32 v{t+3+(i&1)}, v{x+i}, v{t}', f'v_fmac_f32 v{t+2}, v{t+3+(i&1)}, v{t+3+(i&1)}')
    red32(a, t+2, t+1)
    a(f'v_mul_f32 v{t+2}, {fl(1/576)}, v{t+2}')
    rbf(a, t, t+1); rbf(a, t+2, t+1)
    a(f'v_add_f32 v{t+2}, {fl(1e-5)}, v{t+2}'); rbf(a, t+2, t+1)
    a(f'v_sqrt_f32 v{t+2}, v{t+2}', 's_nop 0'); rbf(a, t+2, t+1)
    a(f'v_rcp_f32 v{t+3}, v{t+2}')
    for i in range(9):
        a(f'v_sub_f32 v{x+2*i}, v{x+2*i}, v{t}', f'v_sub_f32 v{x+2*i+1}, v{x+2*i+1}, v{t}', f'v_cvt_pk_bf16_f32 v{o+i}, v{x+2*i}, v{x+2*i+1}')
    unpack(a, x, o, 9)
    for i in range(18):
        q=t+4+(i&1)*2
        a(f'v_mul_f32 v{q}, v{x+i}, v{t+3}', f'v_fma_f32 v{q+1}, -v{q}, v{t+2}, v{x+i}', f'v_fma_f32 v{x+i}, v{q+1}, v{t+3}, v{q}')
    for i in range(9): a(f'v_cvt_pk_bf16_f32 v{o+i}, v{x+2*i}, v{x+2*i+1}')
    unpack(a, x, o, 9)
def wscale(a, v, t, sws, inv):
    a(f'v_max3_u32 v{v}, v{v}, v{v+1}, v{v+2}', f'v_max_u32 v{v}, v{v}, v{v+3}')
    red64(a, v, t, 'v_max_u32')
    a(f'v_lshrrev_b32 v{v}, 7, v{v}', f'v_max_u32 v{v}, 1, v{v}', f'v_min_u32 v{v}, 0xfd, v{v}')
    if not inv: a(f'v_sub_u32 v{v}, 0xfe, v{v}')
    a(f'v_lshlrev_b32 v{v}, 23, v{v}')
def kdesc(name, vg, sg=72):
    vg=(vg+3)//4*4
    return f'''.section .rodata,"a"
.p2align 6
.amdhsa_kernel {name}
  .amdhsa_next_free_vgpr {vg}
  .amdhsa_next_free_sgpr {sg}
  .amdhsa_accum_offset {vg}
  .amdhsa_group_segment_fixed_size 0
  .amdhsa_kernarg_size 88
  .amdhsa_user_sgpr_count 2
  .amdhsa_user_sgpr_kernarg_segment_ptr 1
  .amdhsa_system_sgpr_workgroup_id_x 1
.end_amdhsa_kernel
'''
def khead(name):
    return f'.text\n.globl {name}\n.p2align 8\n.type {name},@function\n{name}:\n'

def rowio(a, op, r, va, vb, srd_, so):
    a(f'buffer_{op}_dwordx4 {vr(r,4)}, v{va}, {srd_}, {so} offen', f'buffer_{op}_dwordx4 {vr(r+4,4)}, v{va}, {srd_}, {so} offen offset:512',
      f'buffer_{op}_dword v{r+8}, v{vb}, {srd_}, {so} offen offset:1024')

import os
INSTR=int(os.environ.get('INSTR','0'))
TS=0x1180000
def stamp(a,k):
    if INSTR: a(f's_memrealtime s[{50+2*k}:{51+2*k}]')
def fin(a,kidx,n):
    if not INSTR: return
    a('s_waitcnt vmcnt(0) lgkmcnt(0)'); stamp(a,n); a('s_waitcnt lgkmcnt(0)','s_mov_b64 exec, 1', 's_lshl_b32 s48, s2, 3', 's_add_u32 s48, s48, s3', 's_lshl_b32 s48, s48, 5', f's_add_u32 s48, s48, 0x{TS+kidx*0x0:x}' if 0 else f's_add_u32 s48, s48, 0x{TS+kidx*0x20000:x}', 'v_mov_b32 v0, 0')
    for k in range(n+1): a(f'v_mov_b32 v1, s{50+2*k}', f'buffer_store_dword v1, v0, s[16:19], s48 offen offset:{4*k}')

SIDE=dict(x.split(':') for x in os.environ.get('SIDE','K1:d,K2:g,K3:u').split(','))
SFL=os.environ.get('SFL','sc0 sc1')
def nside(K): return 216
def side(a,K,first):
    a.lab(K+'_SIDE')
    kb=864 if K=='K3' else 0
    a(f's_sub_u32 s28, s2, {first}','s_cmp_ge_u32 s28, 216',f's_cbranch_scc1 {K}_END','s_waitcnt lgkmcnt(0)',
      's_load_dwordx4 s[8:11], s[0:1], 40','s_load_dwordx2 s[4:5], s[0:1], 56','s_load_dwordx2 s[6:7], s[0:1], 80',
      'v_readfirstlane_b32 s3, v3','s_lshl_b32 s28, s28, 2','s_add_u32 s28, s28, s3',f's_add_u32 s28, s28, {kb}',
      's_mul_i32 s33, s28, 6144','s_add_u32 s38, s33, 3072',
      's_cmp_ge_u32 s28, 864','s_cselect_b32 s36, 864, 0',f's_cselect_b32 s37, 0x{WUT:x}, 0x{WGT:x}' if 0 else f's_cselect_b32 s37, 0x{WUT-WGT:x}, 0','s_sub_u32 s28, s28, s36',
      's_mul_i32 s29, s28, 43691','s_lshr_b32 s29, s29, 18','s_mul_i32 s30, s29, 6','s_sub_u32 s30, s28, s30',
      's_mul_i32 s31, s29, 36864','s_mul_i32 s32, s30, 1536','s_add_u32 s31, s31, s32',
      's_mul_i32 s32, s30, 884736','s_lshl_b32 s34, s29, 7','s_add_u32 s32, s32, s34','s_add_u32 s32, s32, s37',
      'v_lshrrev_b32 v4, 3, v1','v_bfe_u32 v5, v1, 1, 2','v_and_b32 v6, 1, v1','v_mul_u32_u24 v5, 9216, v5','v_lshl_add_u32 v5, v4, 5, v5','v_lshl_add_u32 v5, v6, 4, v5',
      'v_and_b32 v6, 7, v1','v_mul_u32_u24 v4, 18432, v4','v_lshl_add_u32 v4, v6, 4, v4','v_lshlrev_b32 v6, 4, v1','s_waitcnt lgkmcnt(0)')
    srd(a,16,6,WS_SZ); srd(a,20,8,5308416); srd(a,24,10,5308416); srd(a,12,4,5308416)
    SL=int(os.environ.get('SL','6'))
    if SL: a(f's_sleep {SL}')
    if K=='K1':
        for n in range(6): a(f'buffer_load_dwordx4 {vr(8+4*n,4)}, v6, s[12:15], s{(33,38)[n//3]} offen offset:{(n%3)*1024}')
    else:
        for n in range(6): a(f'buffer_load_dwordx4 {vr(8+4*n,4)}, v5, s[{20 if K=="K2" else 24}:{23 if K=="K2" else 27}], s31 offen offset:{n*256}')
        a('s_waitcnt vmcnt(0)')
        for n in range(6): a(f's_add_u32 s35, s32, 0x{WGT+n*147456:x}', f'buffer_store_dwordx4 {vr(8+4*n,4)}, v4, s[16:19], s35 offen {SFL}')
    a('s_waitcnt vmcnt(0)')
RT=[x in ''.join(SIDE.values()) for x in 'gu']

def k2tab(a):
    a('s_endpgm'); a.lab('K1_TAB')
    a("""v_readfirstlane_b32 s3, v3
    v_lshrrev_b32 v13, 4, v1
    v_and_b32 v14, 15, v1
    s_lshl_b32 s38, s3, 4
    v_add_u32 v15, s38, v14
    v_cvt_f32_u32 v15, v15
    v_cvt_f32_u32 v16, v13
    v_cvt_f32_u32 v17, v14
    v_mul_f32 v18, v15, v16
    v_lshlrev_b32 v2, 4, v1
    s_lshl_b32 s38, s3, 13
    s_waitcnt lgkmcnt(0)""")
    srd(a,16,6,WS_SZ)
    a(f'v_mul_f32 v19, {fl(4/64)}, v18', f's_add_u32 s38, s38, 0x{CT:x}', 's_add_u32 s39, s38, 4096')
    for u in range(2): frag(a,64+8*u,68+8*u,15,19,[32*u+c for c in PAT],64,20)
    for t in range(2):
        a(f'v_add_f32 v4, {fl(16.0*t)}, v17', 'v_mul_f32 v5, v4, v16', f'v_mul_f32 v5, {fl(4/32)}, v5')
        frag(a,80+8*t,84+8*t,4,5,PAT,32,20)
    for q in range(8): a(f'buffer_store_dwordx4 {vr(64+4*q,4)}, v2, s[16:19], s{38+q//4} offen offset:{(q%4)*1024}')
```

```python
from common import *
def k1():
    a=A(); stamp(a,0)
    a('''s_load_dwordx2 s[4:5], s[0:1], 0
    s_load_dwordx4 s[8:11], s[0:1], 8
    s_load_dwordx2 s[6:7], s[0:1], 80
    v_and_b32 v1, 63, v0
    v_lshrrev_b32 v3, 6, v0
    s_cmp_ge_u32 s2, 512
    s_cbranch_scc1 K1_SIDE
    v_readfirstlane_b32 s3, v3
    s_cmp_ge_u32 s2, 256
    s_cbranch_scc1 K1_W
    v_lshrrev_b32 v13, 4, v1
    v_and_b32 v14, 15, v1
    v_cvt_f32_u32 v15, v14
    v_cvt_f32_u32 v16, v13
    v_mul_f32 v17, v15, v16''')
    a(f'v_mul_f32 v18, {fl(8/18)}, v17')
    frag(a,20,28,15,18,list(range(8)),18,56,dn=24)
    a('''s_lshr_b32 s28, s2, 3
    s_and_b32 s29, s2, 1
    s_bfe_u32 s30, s2, 0x20001
    s_lshl_b32 s31, s29, 5
    s_lshr_b32 s32, s3, 1
    s_lshl_b32 s33, s32, 4
    s_add_u32 s31, s31, s33
    s_lshl_b32 s33, s30, 2
    s_add_u32 s31, s31, s33
    s_and_b32 s33, s3, 1
    s_lshl_b32 s34, s33, 1
    s_add_u32 s31, s31, s34
    s_lshl_b32 s31, s31, 5
    s_add_u32 s31, s31, s28
    s_mul_i32 s31, s31, 1152
    v_lshrrev_b32 v3, 5, v1
    v_mul_u32_u24 v2, 36864, v3
    v_and_b32 v3, 31, v1
    v_lshl_add_u32 v18, v3, 2, v2
    v_lshl_add_u32 v2, v3, 4, v2
    s_waitcnt lgkmcnt(0)''')
    srd(a,12,4,2048*1152)
    a('''buffer_load_dwordx4 v[4:7], v2, s[12:15], s31 offen
    buffer_load_dwordx4 v[8:11], v2, s[12:15], s31 offen offset:512
    buffer_load_dword v12, v18, s[12:15], s31 offen offset:1024''')
    srd(a,16,6,WS_SZ)
    a('s_mov_b64 exec, 0xffffffff00000000')
    for r in (21,22,23,25,26,27): a(f'v_mov_b32 v{r}, 0')
    a('s_mov_b64 exec, 0xffff000000000000','v_mov_b32 v20, 0','v_mov_b32 v24, 0','s_mov_b64 exec, -1')
    a(f'v_mul_f32 v18, {fl(4/576)}, v17')
    for j in range(8): a(f'v_fmamk_f32 v{56+j}, v15, {fl(PAT[j]/576)}, v18')
    for j in range(8): a(f'v_cos_f32 v{32+j}, v{56+j}')
    for j in range(8): a(f'v_sin_f32 v{40+j}, v{56+j}')
    a('s_lshl_b32 s34, s33, 4','v_add_u32 v18, s34, v14','v_cvt_f32_u32 v18, v18','v_mul_f32 v19, v18, v16',f'v_mul_f32 v19, {fl(8/32)}, v19')
    for j in range(16): a(f'v_mul_f32 v{32+j}, {fl(1/24)}, v{32+j}')
    frag(a,48,52,18,19,list(range(8)),32,56)
    a('s_mul_i32 s35, s32, 0x80008000')
    for j in range(4): a(f'v_xor_b32 v{52+j}, s35, v{52+j}')
    a('''v_lshrrev_b32 v3, 5, v1
    v_mul_u32_u24 v18, 1152, v3
    v_and_b32 v3, 31, v1
    s_mul_i32 s36, s3, 2304
    v_add_u32 v18, s36, v18
    v_lshl_add_u32 v118, v3, 2, v18
    v_lshl_add_u32 v18, v3, 4, v18
    v_bfe_u32 v3, v1, 2, 2
    v_lshl_add_u32 v3, v13, 3, v3
    v_min_u32 v19, 17, v3
    v_add_u32 v3, 4, v3
    v_min_u32 v3, 17, v3
    v_and_b32 v116, 3, v1
    v_lshlrev_b32 v116, 3, v116
    v_add_u32 v116, s36, v116
    v_lshl_add_u32 v117, v3, 6, v116
    v_lshl_add_u32 v116, v19, 6, v116
    s_waitcnt vmcnt(0)''')
    stamp(a,1)
    unpack(a,80,4,9)
    layernorm(a,80,100,56)
    for i in range(9): a(f'v_cvt_pkrtz_f16_f32 v{100+i}, v{80+2*i}, v{81+2*i}')
    a('ds_write_b128 v18, v[100:103]','ds_write_b128 v18, v[104:107] offset:512','ds_write_b32 v118, v108 offset:1024')
    stamp(a,2)
    for h,(A0,D0) in enumerate(((56,64),(80,88))):
        for t in range(2):
            a(f'ds_read_b64_tr_b16 {vr(A0+4*t,2)}, v116 offset:{h*1152+t*32}', f'ds_read_b64_tr_b16 {vr(A0+4*t+2,2)}, v117 offset:{h*1152+t*32}')
    a('''v_mul_u32_u24 v18, 528, v14
    v_lshl_add_u32 v18, v13, 3, v18
    s_lshl_b32 s36, s3, 7
    s_add_u32 s36, s36, 9216
    v_add_u32 v18, s36, v18
    v_lshrrev_b32 v3, 2, v14
    v_mul_u32_u24 v19, 528, v3
    v_and_b32 v3, 3, v14
    v_lshl_add_u32 v19, v3, 6, v19
    v_lshl_add_u32 v19, v13, 4, v19
    s_mul_i32 s36, s32, 8448
    s_add_u32 s37, s36, 9216
    s_sub_u32 s36, 17664, s36
    v_lshl_add_u32 v2, v13, 5, v14
    v_add_u32 v2, s34, v2
    v_lshlrev_b32 v2, 13, v2''')
    for h,(A0,D0) in enumerate(((56,64),(80,88))):
        a(f's_waitcnt lgkmcnt({4 if h==0 else 0})')
        for t in range(2):
            mfma(a,D0+4*t,A0+4*t,20); mfma(a,D0+8+4*t,A0+4*t,24)
    a('v_add_u32 v16, s37, v19','v_add_u32 v17, s36, v19','s_nop 4')
    for h,(A0,D0) in enumerate(((56,64),(80,88))):
        O=104+8*h
        for t in range(2):
            for r in range(4):
                j=4*t+r; re=D0+j; im=D0+8+j
                a(f'v_mul_f32 v{120+r}, v{re}, v{32+j}', f'v_mul_f32 v{124+r}, v{im}, v{32+j}',
                  f'v_fmac_f32 v{120+r}, v{im}, v{40+j}', f'v_fma_f32 v{124+r}, -v{re}, v{40+j}, v{124+r}')
            a(f'v_cvt_pk_f16_f32 v{O+4*t}, v120, v121', f'v_cvt_pk_f16_f32 v{O+4*t+1}, v122, v123',
              f'v_cvt_pk_f16_f32 v{O+4*t+2}, v124, v125', f'v_cvt_pk_f16_f32 v{O+4*t+3}, v126, v127')
            a(f'ds_write_b64 v18, {vr(O+4*t,2)} offset:{h*64+t*32}', f'ds_write_b64 v18, {vr(O+4*t+2,2)} offset:{8448+h*64+t*32}')
    a('''s_lshl_b32 s38, s32, 12
    s_lshl_b32 s39, s29, 11
    s_add_u32 s38, s38, s39
    s_lshr_b32 s39, s28, 4
    s_lshl_b32 s39, s39, 10
    s_add_u32 s38, s38, s39
    s_lshl_b32 s39, s30, 8
    s_add_u32 s38, s38, s39
    s_and_b32 s39, s28, 15
    s_lshl_b32 s39, s39, 4
    s_add_u32 s38, s38, s39
    s_add_u32 s39, s38, 0x100000
    s_add_u32 s40, s38, 0x200000
    s_waitcnt lgkmcnt(0)
    s_barrier''')
    stamp(a,3)
    for P in range(3):
        for rho in range(2):
            q=2*P+rho
            a(f'ds_read_b128 {vr(56+8*q,4)}, v16 offset:{P*2112+rho*256}', f'ds_read_b128 {vr(60+8*q,4)}, v17 offset:{P*2112+rho*256}')
    for q in range(6):
        a(f's_waitcnt lgkmcnt({10-2*q})')
        mfma(a,104+4*q,56+8*q,48); mfma(a,104+4*q,60+8*q,52,104+4*q)
    a('s_nop 7')
    for P in range(3):
        for k in range(4): a(f'v_cvt_pk_f16_f32 v{56+4*P+k}, v{104+8*P+2*k}, v{105+8*P+2*k}')
        if P==2: a('s_mov_b64 exec, 0xffffffff')
        a(f'buffer_store_dwordx4 {vr(56+4*P,4)}, v2, s[16:19], s{38+P} offen')
    stamp(a,4); fin(a,0,5)
    a('s_endpgm')
    a.lab('K1_W')
    a('s_waitcnt lgkmcnt(0)'); srd(a,16,6,WS_SZ)
    srd(a,20,8,2048*578); srd(a,24,10,2048*578)
    a('''s_sub_u32 s28, s2, 256
    s_and_b32 s29, s28, 7
    s_lshl_b32 s29, s29, 5
    s_lshr_b32 s28, s28, 3
    s_add_u32 s28, s28, s29
    s_mul_i32 s29, s28, 4624
    v_lshlrev_b32 v2, 4, v0
    v_add_u32 v3, 0x1000, v2
    v_mov_b32 v20, 0x7fffffff
    v_cmp_gt_u32 vcc, 33, v0
    s_nop 1
    v_cndmask_b32 v20, v20, v3, vcc
    buffer_load_dwordx4 v[4:7], v2, s[20:23], s29 offen
    buffer_load_dwordx4 v[8:11], v2, s[24:27], s29 offen
    buffer_load_dwordx4 v[12:15], v20, s[20:23], s29 offen
    buffer_load_dwordx4 v[16:19], v20, s[24:27], s29 offen
    v_min_u32 v3, 0x1210, v3
    s_waitcnt vmcnt(0)
    ds_write_b128 v2, v[4:7]
    ds_write_b128 v2, v[8:11] offset:4640
    ds_write_b128 v3, v[12:15]
    ds_write_b128 v3, v[16:19] offset:4640''')
    for i in range(16): a(f'v_and_b32 v{24+i}, 0x7fff7fff, v{4+i}')
    for i in range(1,16): a(f'v_pk_max_u16 v24, v24, v{24+i}')
    a('v_lshrrev_b32 v25, 16, v24','v_and_b32 v24, 0xffff, v24','v_max_u32 v24, v24, v25')
    red64(a,24,25,'v_max_u32')
    a('''s_lshl_b32 s30, s3, 2
    s_add_u32 s30, s30, 9296
    v_mov_b32 v25, s30
    ds_write_b32 v25, v24
    v_and_b32 v21, 1, v0
    v_mul_u32_u24 v22, 2312, v21
    v_and_b32 v23, 0xfe, v0
    v_add_u32 v22, v22, v23
    v_lshlrev_b32 v23, 12, v23
    v_lshl_add_u32 v23, v21, 4, v23
    s_lshl_b32 s31, s28, 5''')
    a(f's_add_u32 s31, s31, 0x{WT:x}', 's_add_u32 s32, s31, 0x100000', 's_add_u32 s33, s31, 0x200000', 's_waitcnt lgkmcnt(0)','s_barrier')
    for rd in range(3):
        for rr in range(4):
            a(f'ds_read_u16 v{4+4*rd+rr}, v22 offset:{rr*578+rd*256}', f'ds_read_u16 v{28+4*rd+rr}, v22 offset:{4640+rr*578+rd*256}')
    a('v_mov_b32 v25, 9296','ds_read_b128 v[24:27], v25','s_waitcnt lgkmcnt(0)')
    for q in range(12): a(f'v_lshl_or_b32 v{4+q}, v{28+q}, 16, v{4+q}')
    a('buffer_store_dwordx4 v[4:7], v23, s[16:19], s31 offen','buffer_store_dwordx4 v[8:11], v23, s[16:19], s32 offen',
      'v_cmp_gt_u32 vcc, 66, v0','s_and_saveexec_b64 s[34:35], vcc','s_cbranch_execz K1_END',
      'buffer_store_dwordx4 v[12:15], v23, s[16:19], s33 offen','s_waitcnt lgkmcnt(0)',
      'v_max3_u32 v24, v24, v25, v26','v_max_u32 v24, v24, v27','s_lshl_b32 s28, s28, 2',f's_add_u32 s28, s28, 0x{WMAX:x}',
      'v_cmp_eq_u32 vcc, 0, v0','s_and_saveexec_b64 s[34:35], vcc','s_cbranch_execz K1_END','v_mov_b32 v2, 0','buffer_store_dword v24, v2, s[16:19], s28 offen')
    a('s_endpgm'); side(a,'K1',512)
    a.lab('K1_END'); a('s_endpgm')
    return a.txt(), 128, 26112
```

```python
from common import *
def cmul_pack(a, re, im, c, s, O, sign, T):
    for r in range(4):
        a(f'v_mul_f32 v{T+r}, v{re+r}, v{c+r}', f'v_mul_f32 v{T+4+r}, v{im+r}, v{c+r}')
        if sign<0: a(f'v_fmac_f32 v{T+r}, v{im+r}, v{s+r}', f'v_fma_f32 v{T+4+r}, -v{re+r}, v{s+r}, v{T+4+r}')
        else: a(f'v_fma_f32 v{T+r}, -v{im+r}, v{s+r}, v{T+r}', f'v_fmac_f32 v{T+4+r}, v{re+r}, v{s+r}')
    ore,oim=O
    a(f'v_cvt_pk_f16_f32 v{ore}, v{T}, v{T+1}', f'v_cvt_pk_f16_f32 v{ore+1}, v{T+2}, v{T+3}',
      f'v_cvt_pk_f16_f32 v{oim}, v{T+4}, v{T+5}', f'v_cvt_pk_f16_f32 v{oim+1}, v{T+6}, v{T+7}')
def k2():
    a=A(); stamp(a,0)
    a('''s_load_dwordx2 s[6:7], s[0:1], 80
    v_and_b32 v1, 63, v0
    v_lshrrev_b32 v3, 6, v0
    s_cmp_ge_u32 s2, 289
    s_cbranch_scc1 K2_SIDE
    v_readfirstlane_b32 s3, v3
    s_lshr_b32 s28, s2, 5
    s_add_u32 s28, s28, 1
    s_and_b32 s29, s2, 31
    s_cmp_lt_u32 s2, 256
    s_cbranch_scc1 K2_A
    s_mov_b32 s28, 0
    s_sub_u32 s29, s2, 256
    s_cmp_lt_u32 s2, 273
    s_cbranch_scc1 K2_A
    s_mov_b32 s28, 9
    s_sub_u32 s29, s2, 273''')
    a.lab('K2_A')
    a('''s_lshl_b32 s30, s28, 5
    s_add_u32 s30, s30, s29
    s_lshl_b32 s30, s30, 13
    s_mul_i32 s31, s29, 18
    s_add_u32 s31, s31, s28
    s_sub_u32 s32, 576, s31
    s_cmp_gt_u32 s31, 288
    s_cselect_b32 s32, s32, s31
    s_cselect_b32 s33, -1, 0
    s_cselect_b32 s34, 0x80000000, 0
    s_lshl_b32 s32, s32, 13''')
    a(f's_add_u32 s32, s32, 0x{WT:x}', 's_mov_b32 s35, 2.0', 's_cmp_eq_u32 s31, 0', 's_cselect_b32 s35, 1.0, s35', 's_cmp_eq_u32 s31, 288', 's_cselect_b32 s35, 1.0, s35')
    a('''v_lshrrev_b32 v13, 4, v1
    v_and_b32 v14, 15, v1
    s_lshl_b32 s38, s3, 4
    v_add_u32 v15, s38, v14
    v_lshl_add_u32 v3, v13, 8, v15''')
    a('''v_cvt_f32_u32 v15, v15
    v_cvt_f32_u32 v16, v13
    v_cvt_f32_u32 v17, v14
    v_mul_f32 v18, v15, v16''')
    a(f'v_mul_f32 v19, {fl(4/64)}, v18')
    for u in range(2): frag(a,96+12*u,100+12*u,15,19,[32*u+c for c in PAT],64,20,dn=104+12*u)
    a('v_lshlrev_b32 v2, 4, v1','s_waitcnt lgkmcnt(0)')
    srd(a,16,6,WS_SZ)
    a('s_add_u32 s36, s30, 4096', 's_lshl_b32 s39, s3, 13', f's_add_u32 s39, s39, 0x{CT:x}', 's_add_u32 s40, s39, 4096')
    for p in range(2):
        for q in range(4): a(f'buffer_load_dwordx4 {vr(64+16*p+4*q,4)}, v2, s[16:19], s{30 if p==0 else 36} offen offset:{q*1024}')
    a(f's_mov_b32 s37, 0x{WMAX:x}', 'buffer_load_dwordx4 v[56:59], v2, s[16:19], s37 offen')
    for t in range(2):
        for r in range(4):
            j=4*t+r
            a(f'v_add_u32 v4, {64*(16*t+r)}, v3', 'v_xor_b32 v4, s33, v4', 'v_subrev_u32 v4, s33, v4', 'v_and_b32 v4, 0x7ff, v4', 'v_lshlrev_b32 v4, 2, v4',
              f'buffer_load_dword v{48+j}, v4, s[16:19], s32 offen')
    for t in range(2):
        a(f'v_add_f32 v4, {fl(16.0*t)}, v17', 'v_mul_f32 v5, v4, v16', f'v_mul_f32 v5, {fl(4/32)}, v5')
        frag(a,120+12*t,124+12*t,4,5,PAT,32,20,dn=128+12*t)
    sc=2048**-0.5
    a(f'v_mul_f32 v19, {fl(4/2048)}, v18')
    for j in range(8): a(f'v_fmamk_f32 v{20+j}, v15, {fl(PAT[j]/2048)}, v19')
    a('v_lshlrev_b32 v4, 2, v13','v_add_u32 v4, s38, v4','v_cvt_f32_u32 v4, v4',f'v_mul_f32 v4, {fl(1/2048)}, v4')
    for t in range(2):
        a(f'v_add_f32 v5, {fl(16.0*t)}, v17', 'v_mul_f32 v6, v5, v4')
        for r in range(4): a(f'v_fmamk_f32 v{28+4*t+r}, v5, {fl(r/2048)}, v6')
    for j in range(8): a(f'v_cos_f32 v{144+j}, v{20+j}', f'v_sin_f32 v{152+j}, v{20+j}', f'v_cos_f32 v{160+j}, v{28+j}', f'v_sin_f32 v{168+j}, v{28+j}')
    a('s_nop 0')
    for j in range(32): a(f'v_mul_f32 v{144+j}, {fl(sc)}, v{144+j}')
    X=lambda p,u,t: 64+16*p+8*u+4*t
    stamp(a,1)
    a('s_waitcnt vmcnt(9)')
    stamp(a,2)
    for t in range(2):
        mfma(a,20+4*t,X(0,0,t),96); mfma(a,28+4*t,X(1,0,t),96)
        mfma(a,20+4*t,X(1,0,t),100,20+4*t); mfma(a,28+4*t,X(0,0,t),104,28+4*t)
        mfma(a,20+4*t,X(0,1,t),108,20+4*t); mfma(a,28+4*t,X(1,1,t),108,28+4*t)
        mfma(a,20+4*t,X(1,1,t),112,20+4*t); mfma(a,28+4*t,X(0,1,t),116,28+4*t)
    a('s_waitcnt vmcnt(8)')
    wscale(a,56,57,None,False)
    a('v_mul_f32 v56, s35, v56')
    for t in range(2): cmul_pack(a,20+4*t,28+4*t,144+4*t,152+4*t,(36+2*t,40+2*t),-1,4)
    a('s_nop 1')
    for t in range(2):
        c=120+12*t
        mfma(a,64+4*t,c,36); mfma(a,72+4*t,c,40); mfma(a,64+4*t,c+4,40,64+4*t); mfma(a,72+4*t,c+8,36,72+4*t)
    a('s_waitcnt vmcnt(0)')
    stamp(a,3)
    for j in range(8):
        a(f'v_lshlrev_b32 v{80+j}, 16, v{48+j}', f'v_and_b32 v{88+j}, 0xffff0000, v{48+j}', f'v_xor_b32 v{88+j}, s34, v{88+j}',
          f'v_mul_f32 v{80+j}, v56, v{80+j}', f'v_mul_f32 v{88+j}, v56, v{88+j}')
    for t in range(2): cmul_pack(a,64+4*t,72+4*t,80+4*t,88+4*t,(36+2*t,40+2*t),+1,4)
    a('s_nop 1')
    for t in range(2):
        c=120+12*t
        mfma(a,20+4*t,36,c); mfma(a,28+4*t,40,c); mfma(a,20+4*t,40,c+8,20+4*t); mfma(a,28+4*t,36,c+4,28+4*t)
    a('s_lshl_b32 s39, s3, 11','v_lshlrev_b32 v3, 3, v1','v_add_u32 v4, s39, v3','s_nop 4')
    for t in range(2): cmul_pack(a,20+4*t,28+4*t,160+4*t,168+4*t,(36+4*t,38+4*t),+1,8)
    for q in range(4): a(f'ds_write_b64 v4, {vr(36+2*q,2)} offset:{q*512}')
    a('s_waitcnt lgkmcnt(0)','s_barrier')
    for u in range(2):
        for q in range(4):
            o=(2*u*2048+q*512)
            a(f'ds_read_b64 {vr(64+16*u+4*q,2)}, v3 offset:{o}', f'ds_read_b64 {vr(66+16*u+4*q,2)}, v3 offset:{o+2048}')
    B=lambda u,t,p: 64+16*u+8*t+4*p
    a(f's_add_u32 s40, s30, 0x{ZT:x}', 's_lshl_b32 s39, s3, 10', 's_add_u32 s40, s40, s39', 's_add_u32 s41, s40, 4096')
    for u in range(2):
        a(f's_waitcnt lgkmcnt({8 if u==0 else 0})')
        c=96+12*u
        for t in range(2):
            mfma(a,20+4*t,c,B(u,t,0),None if u==0 else 20+4*t); mfma(a,28+4*t,c,B(u,t,1),None if u==0 else 28+4*t)
            mfma(a,20+4*t,c+8,B(u,t,1),20+4*t); mfma(a,28+4*t,c+4,B(u,t,0),28+4*t)
    a('s_nop 7')
    for k in range(8): a(f'v_cvt_pk_f16_f32 v{36+k}, v{20+2*k}, v{21+2*k}')
    a('buffer_store_dwordx4 v[36:39], v2, s[16:19], s40 offen','buffer_store_dwordx4 v[40:43], v2, s[16:19], s41 offen')
    stamp(a,4); fin(a,1,5)
    a('s_endpgm'); side(a,'K2',289)
    a.lab('K2_END'); a('s_endpgm')
    return a.txt(), 176, 8192
```

```python
from common import *
def k4():
    a=A(); stamp(a,0)
    RED=55296
    a('''s_load_dwordx4 s[8:11], s[0:1], 40
    s_load_dwordx2 s[4:5], s[0:1], 56
    s_load_dwordx2 s[6:7], s[0:1], 80
    v_and_b32 v1, 63, v0
    v_lshrrev_b32 v3, 6, v0
    s_cmp_ge_u32 s2, 288
    s_cbranch_scc1 K4_END
    v_readfirstlane_b32 s3, v3
    s_and_b32 s28, s2, 7
    s_mul_i32 s28, s28, 36
    s_lshr_b32 s29, s2, 3
    s_add_u32 s28, s28, s29
    v_lshlrev_b32 v2, 4, v1
    s_waitcnt lgkmcnt(0)''')
    srd(a,16,6,WS_SZ); srd(a,20,8,5308416); srd(a,24,10,5308416); srd(a,12,4,5308416)
    a(f's_mov_b32 s30, 0x{RK:x}', f's_mov_b32 s31, 0x{RK+4096:x}')
    for n in range(2): a(f'buffer_load_dwordx4 {vr(20+4*n,4)}, v2, s[16:19], s{30+n//4} offen offset:{(n%4)*1024}')
    a('''s_mul_i32 s32, s3, 3072
    s_mul_i32 s34, s3, 9216
    s_mul_i32 s35, s28, 18432
    s_add_u32 s32, s32, s35
    s_mul_i32 s33, s3, 192
    s_add_u32 s35, s35, s33
    s_mov_b32 s36, 43691
    v_lshrrev_b32 v3, 1, v1
    v_mul_u32_u24 v3, 9216, v3
    v_and_b32 v4, 1, v1
    v_lshl_add_u32 v3, v4, 4, v3
    s_mul_i32 s37, s3, 884736
    s_lshl_b32 s33, s28, 5
    s_add_u32 s37, s37, s33''')
    for n in range(3):
        for m in range(2):
            if RT[m]: a(f's_add_u32 m0, s34, {m*3072+n*1024}', f's_add_u32 s33, s32, 0x{(WGT,WUT)[m]+n*1024:x}', f'buffer_load_dwordx4 v2, s[16:19], s33 offen lds')
            else: a(f's_add_u32 m0, s34, {m*3072+n*1024}', f's_add_u32 s33, s37, {n*32*9216}', f'buffer_load_dwordx4 v3, s[{20+4*m}:{23+4*m}], s33 offen lds')
    for n in range(3):
        a(f'v_add_u32 v4, {64*n}, v1', 'v_mul_lo_u32 v5, v4, s36', 'v_lshrrev_b32 v5, 19, v5', 'v_mul_u32_u24 v6, 12, v5', 'v_sub_u32 v4, v4, v6',
          'v_mul_u32_u24 v5, 1152, v5', 'v_lshl_add_u32 v4, v4, 4, v5', f's_add_u32 m0, s34, {6144+n*1024}', 's_nop 0', 'buffer_load_dwordx4 v4, s[12:15], s35 offen lds')
    a('''v_lshrrev_b32 v13, 4, v1
    v_and_b32 v14, 15, v1
    v_bfe_u32 v5, v1, 2, 2
    v_and_b32 v6, 3, v1
    v_lshl_add_u32 v7, v13, 3, v5
    v_lshlrev_b32 v7, 5, v7
    v_lshl_add_u32 v7, v6, 3, v7
    v_add_u32 v7, s34, v7
    v_lshl_add_u32 v8, v13, 2, v5
    v_mul_u32_u24 v8, 192, v8
    v_lshl_add_u32 v8, v6, 3, v8
    v_add_u32 v8, s34, v8
    s_waitcnt vmcnt(9)
    v_max_u32 v10, v20, v21
    v_min_u32 v11, v20, v21''')
    stamp(a,1)
    for n in range(2,8): a(f'v_med3_u32 v11, v10, v11, v{20+n}', f'v_max_u32 v10, v10, v{20+n}')
    def merge(): a('v_min_u32 v17, v10, v15','v_max_u32 v10, v10, v15','v_max3_u32 v11, v11, v16, v17')
    for m in ['quad_perm:[1,0,3,2]','quad_perm:[2,3,0,1]','row_half_mirror','row_mirror']:
        a('s_nop 1', f'v_mov_b32_dpp v15, v10 {m} row_mask:0xf bank_mask:0xf', f'v_mov_b32_dpp v16, v11 {m} row_mask:0xf bank_mask:0xf'); merge()
    for sw in ['v_permlane16_swap_b32','v_permlane32_swap_b32']:
        a('v_mov_b32 v15, v10','v_mov_b32 v16, v11','s_nop 1',f'{sw} v10, v15',f'{sw} v11, v16'); merge()
    a('''v_and_b32 v4, 1, v1
    v_cmp_eq_u32 vcc, 1, v4
    s_nop 1
    v_cndmask_b32 v15, v10, v11, vcc
    v_and_b32 v15, 0xffff, v15
    v_sub_u32 v15, 0xffff, v15
    v_mul_u32_u24 v15, 1152, v15
    v_lshl_add_u32 v15, v13, 4, v15''')
    a(f's_mul_i32 s33, s3, 192', f's_add_u32 s33, s33, 0x{HN:x}')
    for n in range(3): a(f'buffer_load_dwordx4 {vr(20+4*n,4)}, v15, s[16:19], s33 offen offset:{64*n}')
    a('s_or_b32 s33, s2, s3','s_cmp_lg_u32 s33, 0','s_cbranch_scc1 K4_NS','s_mov_b64 exec, 1','v_mov_b32 v5, 0',f's_mov_b32 s33, 0x{SEL:x}',
      'buffer_store_dwordx2 v[10:11], v5, s[16:19], s33 offen','s_mov_b64 exec, -1')
    a.lab('K4_NS')
    stamp(a,2)
    a('s_waitcnt vmcnt(0)')
    stamp(a,3)
    for m in range(2):
        for n in range(3):
            for jj in range(2): a(f'ds_read_b64_tr_b16 {vr(32+12*m+4*n+2*jj,2)}, v7 offset:{m*3072+n*1024+jj*128}')
    for t in range(6): a(f'ds_read_b64_tr_b16 {vr(64+2*t,2)}, v8 offset:{6144+t*32}')
    a(f's_lshl_b32 s33, s3, 8', f's_add_u32 s33, s33, {RED}', 'v_lshlrev_b32 v5, 4, v13', 'v_lshl_add_u32 v5, v4, 6, v5', 'v_add_u32 v6, s33, v5', f'v_add_u32 v5, {RED}, v5')
    a('s_waitcnt lgkmcnt(6)')
    for m in range(2):
        for n in range(3): mfma(a,56+4*m,32+12*m+4*n,20+4*n,None if n==0 else 56+4*m,kind='16x16x32_bf16')
    a('s_nop 7','s_mov_b64 exec, 0x0003000300030003','ds_write_b128 v6, v[56:59]','ds_write_b128 v6, v[60:63] offset:128','s_mov_b64 exec, -1','s_waitcnt lgkmcnt(0)','s_barrier')
    for w in range(6):
        for m in range(2): a(f'ds_read_b128 {vr(80+8*w+4*m,4)}, v5 offset:{w*256+m*128}')
    a('s_waitcnt lgkmcnt(0)')
    for w in range(1,6):
        for k in range(8): a(f'v_add_f32 v{80+k}, v{80+k}, v{80+8*w+k}')
    for k in range(4): a(f'v_cvt_pk_bf16_f32 v{20+k}, v{80+2*k}, v{81+2*k}')
    unpack(a,80,20,4)
    for k in range(4): a(f'v_mul_f32 v{20+k}, {fl(-1.4426950408889634)}, v{80+k}')
    for k in range(4): a(f'v_exp_f32 v{20+k}, v{20+k}')
    for k in range(4): a(f'v_add_f32 v{20+k}, 1.0, v{20+k}')
    for k in range(4): a(f'v_rcp_f32 v{20+k}, v{20+k}')
    for k in range(4): a(f'v_mul_f32 v{20+k}, v{80+k}, v{20+k}')
    a('v_cvt_pk_bf16_f32 v24, v20, v21','v_cvt_pk_bf16_f32 v25, v22, v23')
    unpack(a,20,24,2)
    for k in range(4): a(f'v_mul_f32 v{20+k}, v{20+k}, v{84+k}')
    a('v_cvt_pk_bf16_f32 v24, v20, v21','v_cvt_pk_bf16_f32 v25, v22, v23')
    a('s_mul_i32 s33, s28, 4608','s_mul_i32 s34, s3, 384','s_add_u32 s33, s33, s34',f's_add_u32 s33, s33, 0x{PART:x}','v_mul_u32_u24 v5, 2304, v14','v_lshl_add_u32 v5, v13, 4, v5')
    for t in range(6): mfma(a,32+4*t,64+2*t,24,kind='16x16x16_bf16',n=2)
    a('s_nop 7','s_mov_b64 exec, 0x0003000300030003')
    for t in range(6): a(f'buffer_store_dwordx4 {vr(32+4*t,4)}, v5, s[16:19], s33 offen offset:{64*t}')
    stamp(a,4); fin(a,3,5)
    a.lab('K4_END'); a('s_endpgm')
    return a.txt(), 128, RED+1536
def k5():
    a=A(); stamp(a,0); a('s_mov_b32 s3, 0')
    a('''s_load_dwordx2 s[10:11], s[0:1], 64
    s_load_dwordx2 s[6:7], s[0:1], 80
    s_cmp_ge_u32 s2, 36
    s_cbranch_scc1 K5_END
    v_and_b32 v1, 31, v0
    v_lshrrev_b32 v2, 5, v0
    v_mul_u32_u24 v3, 165888, v2
    v_lshl_add_u32 v3, v1, 2, v3
    s_lshl_b32 s28, s2, 7
    s_waitcnt lgkmcnt(0)''')
    a(f's_add_u32 s4, s6, 0x{SEL:x}','s_addc_u32 s5, s7, 0','s_load_dwordx2 s[8:9], s[4:5], 0')
    srd(a,16,6,WS_SZ); srd(a,24,10,2048*1152)
    a(f's_add_u32 s28, s28, 0x{PART:x}')
    for n in range(36): a(f'buffer_load_dword v{8+n}, v3, s[16:19], s28 offen', 's_add_u32 s28, s28, 4608')
    a('''s_waitcnt lgkmcnt(0)
    s_cmp_ge_u32 s2, 18
    s_cselect_b32 s8, s9, s8
    s_cselect_b32 s29, 18, 0
    s_sub_u32 s29, s2, s29
    s_and_b32 s30, s8, 0xffff
    s_sub_u32 s30, 0xffff, s30
    s_mul_i32 s30, s30, 1152
    s_lshl_b32 s29, s29, 6
    s_add_u32 s30, s30, s29
    v_lshlrev_b32 v4, 1, v1''')
    a(f's_add_u32 s31, s30, 0x{HH:x}', f's_add_u32 s32, s30, 0x{HN:x}', 'buffer_load_ushort v5, v4, s[16:19], s31 offen', 'buffer_load_ushort v6, v4, s[16:19], s32 offen')
    a('''s_and_b32 s33, s8, 0xffff0000
    s_ashr_i32 s34, s33, 31
    s_not_b32 s34, s34
    s_or_b32 s34, s34, 0x80000000
    s_xor_b32 s33, s33, s34
    s_and_b32 s33, s33, 0xffff0000
    v_mov_b32 v7, s33''')
    a(f'v_mul_f32 v7, {fl(-1.4426950408889634)}, v7','v_exp_f32 v7, v7','s_nop 0','v_add_f32 v7, 1.0, v7','v_rcp_f32 v7, v7','s_nop 0')
    rbf(a,7,50)
    a('v_lshlrev_b32 v51, 2, v0','s_waitcnt vmcnt(2)')
    stamp(a,1)
    for n in range(1,36): a(f'v_add_f32 v8, v8, v{8+n}')
    a('ds_write_b32 v51, v8','s_waitcnt lgkmcnt(0)','s_barrier','v_cmp_gt_u32 vcc, 32, v0','s_and_saveexec_b64 s[34:35], vcc','s_cbranch_execz K5_END')
    for n in range(4): a(f'ds_read2_b32 v[{8+2*n}:{9+2*n}], v51 offset0:{64*n} offset1:{64*n+32}')
    a('s_waitcnt lgkmcnt(0)')
    for n in range(1,8): a(f'v_add_f32 v8, v8, v{8+n}')
    rbf(a,8,50); a('v_mul_f32 v8, v8, v7'); rbf(a,8,50)
    a('s_waitcnt vmcnt(0)','v_lshlrev_b32 v5, 16, v5','v_lshlrev_b32 v6, 16, v6','v_add_f32 v8, v6, v8'); rbf(a,8,50)
    a('v_add_f32 v8, v5, v8','v_cvt_pk_bf16_f32 v8, v8, v8','buffer_store_short v8, v4, s[24:27], s30 offen')
    stamp(a,2); fin(a,4,3)
    a.lab('K5_END'); a('s_endpgm')
    return a.txt(), 56, 1024
```
